```python
import torch

def _softmax(x, axis=-1):
    return torch.softmax(x, dim=axis)
def _gelu(x):
    return torch.nn.functional.gelu(x, approximate="tanh")
def _silu(x):
    return torch.nn.functional.silu(x)
def _sigmoid(x):
    return torch.sigmoid(x)
def _layernorm(x, axis=-1, eps=1e-5):
    m = x.mean(dim=axis, keepdim=True)
    v = x.var(dim=axis, keepdim=True, unbiased=False)
    return (x - m) / torch.sqrt(v + eps)
def _scatter_add(tgt, idx, src, axis=0):
    return tgt.clone().index_add_(axis, idx, src)
def _segment_sum(src, seg, n):
    out = torch.zeros((n,) + src.shape[1:], dtype=src.dtype)
    return out.index_add_(0, seg, src)
def _pad(x, pw):
    flat = tuple(v for pair in reversed(pw) for v in pair)
    return torch.nn.functional.pad(x, flat)

kernel_name = 'interleave_layers__spectral_gfnet__spectral_gfnet__prompt'

def setup_inputs():

    _w = (lambda a: (lambda t: t.to(torch.bfloat16) if t.is_floating_point() else t)(torch.as_tensor(a)))
    def _A_setup():
        B, S, D = 1, 2048, 1024
        Df = D // 2 + 1
        return {
            "x": _w((lambda *s: torch.randn(*s, dtype=torch.bfloat16) * 0.05)(B, S, D)),
            "w_r": _w((lambda *s: torch.randn(*s, dtype=torch.bfloat16) * 0.2)(S, Df) * 0.02),
            "w_i": _w((lambda *s: torch.randn(*s, dtype=torch.bfloat16) * 0.2)(S, Df) * 0.02),
        }
    _A_in = _A_setup()

    def _B_setup():
        B, S, D = 1, 2048, 1024
        Df = D // 2 + 1
        return {
            "x": _w((lambda *s: torch.randn(*s, dtype=torch.bfloat16) * 0.05)(B, S, D)),
            "w_r": _w((lambda *s: torch.randn(*s, dtype=torch.bfloat16) * 0.2)(S, Df) * 0.02),
            "w_i": _w((lambda *s: torch.randn(*s, dtype=torch.bfloat16) * 0.2)(S, Df) * 0.02),
        }
    _B_in = _B_setup()

    return {
        "A_x": _A_in["x"],
        "A_w_r": _A_in["w_r"],
        "A_w_i": _A_in["w_i"],
        "B_x": _B_in["x"],
        "B_w_r": _B_in["w_r"],
        "B_w_i": _B_in["w_i"],
    }

def reference(A_x, A_w_r, A_w_i, B_x, B_w_r, B_w_i):
    def _A_ref(x, w_r, w_i):
        B, S, D = x.shape
        X = (lambda x, axes=(-2,-1): torch.fft.rfft2(x.float(), dim=axes))(x, axes=(-2, -1))
        W = w_r + 1j * w_i
        X = X * W
        y = (lambda x, s, axes=(-2,-1): torch.fft.irfft2(x, s=s, dim=axes).to(torch.bfloat16))(X, (S, D), axes=(-2, -1))
        return y

    def _B_ref(x, w_r, w_i):
        B, S, D = x.shape
        X = (lambda x, axes=(-2,-1): torch.fft.rfft2(x.float(), dim=axes))(x, axes=(-2, -1))
        W = w_r + 1j * w_i
        X = X * W
        y = (lambda x, s, axes=(-2,-1): torch.fft.irfft2(x, s=s, dim=axes).to(torch.bfloat16))(X, (S, D), axes=(-2, -1))
        return y

    x = A_x
    x = x + _A_ref(_layernorm(x, axis=-1), A_w_r, A_w_i)
    x = x + _B_ref(_layernorm(x, axis=-1), B_w_r, B_w_i)
    x = x + _A_ref(_layernorm(x, axis=-1), A_w_r, A_w_i)
    x = x + _B_ref(_layernorm(x, axis=-1), B_w_r, B_w_i)
    return x
```

```python
import re

REG_RE = re.compile(r'(?<![\w.])(-?)(?:abs\()?\|?([vas])(?:(\d+)|\[(\d+):(\d+)\])')

def regs_of(tok):
    out = set()
    for m in re.finditer(r'(?<![\w.])([vas])(?:(\d+)(?![\w\[])|\[(\d+):(\d+)\])', tok):
        f = m.group(1)
        if m.group(2) is not None:
            out.add((f, int(m.group(2))))
        else:
            for i in range(int(m.group(3)), int(m.group(4)) + 1):
                out.add((f, i))
    if re.search(r'\bvcc\b', tok): out |= {('vcc', 0)}
    if re.search(r'\bexec\b', tok): out |= {('exec', 0)}
    if re.search(r'\bm0\b', tok): out |= {('m0', 0)}
    return out

TRANS = ('v_exp_f32', 'v_log_f32', 'v_rcp_f32', 'v_rsq_f32', 'v_sqrt_f32', 'v_sin_f32', 'v_cos_f32')

class Ins:
    def __init__(self, text):
        self.text = text
        t = text.split(';')[0].strip()
        self.is_label = t.endswith(':')
        self.op = t.split()[0] if t and not self.is_label else ''
        rest = t[len(self.op):].strip()
        ops, depth, cur = [], 0, ''
        for ch in rest:
            if ch in '[(': depth += 1
            if ch in '])': depth -= 1
            if ch == ',' and depth == 0:
                ops.append(cur.strip()); cur = ''
            else:
                cur += ch
        if cur.strip(): ops.append(cur.strip())
        self.ops = ops
        op = self.op
        self.is_mfma = op.startswith('v_mfma')
        self.is_valu = op.startswith('v_') and not self.is_mfma
        self.is_vmem = op.startswith(('buffer_', 'global_', 'flat_', 'scratch_'))
        self.is_ds = op.startswith('ds_')
        self.is_salu = op.startswith('s_')
        self.is_trans = any(op.startswith(x) for x in TRANS)
        self.is_dpp = ('quad_perm' in t or 'row_' in t or 'wave_' in t) and self.is_valu
        self.is_permlane = op.startswith('v_permlane')
        self.is_branch = op.startswith(('s_branch', 's_cbranch', 's_setpc', 's_swappc', 's_endpgm'))
        w, r = set(), set()
        first = regs_of(ops[0].split()[0]) if ops else set()
        others = set()
        for o in ops[1:]: others |= regs_of(o)
        if self.is_vmem:
            if 'store' in op or ('atomic' in op and 'sc0' not in t):
                r = first | others
            else:
                w, r = first, others
                if 'lds' in t.split(): w, r = set(), first | others
        elif self.is_ds:
            if op.startswith(('ds_write', 'ds_add', 'ds_max', 'ds_min')) and 'rtn' not in op:
                r = first | others
            else:
                w, r = first, others
                if 'd16' in op: r = r | first
        elif self.is_valu or self.is_mfma:
            w, r = first, others
            if op.startswith('v_cmp'):
                if op.startswith('v_cmpx'): w = w | {('exec', 0)}
            if op.startswith(('v_fmac', 'v_pk_fmac', 'v_mac', 'v_dot2c')): r = r | first
            if self.is_permlane and 'swap' in op:
                w = first | regs_of(ops[1]); r = w
            if op.startswith('v_swap'):
                w = first | regs_of(ops[1]); r = w
            if op.startswith(('v_add_co', 'v_sub_co', 'v_addc_co', 'v_subb_co', 'v_subrev_co', 'v_div_scale')):
                w = first | regs_of(ops[1]); r = set().union(*[regs_of(o) for o in ops[2:]])
            if self.is_dpp: r = r | first
            if op.startswith('v_writelane'): r = r | first
        elif self.is_salu:
            if op.startswith(('s_cmp', 's_waitcnt', 's_barrier', 's_nop', 's_sleep', 's_setprio', 's_bitcmp')) or self.is_branch:
                r = first | others
            else:
                w, r = first, others
                if 'saveexec' in op: w = w | {('exec', 0)}
        self.w, self.r = w, r
        self.passes = 0
        if self.is_mfma:
            self.passes = 8 if '32x32x16' in op else 4 if '16x16x32' in op else 16
            self.srcA = regs_of(ops[1]); self.srcB = regs_of(ops[2]); self.srcC = regs_of(ops[3])
        self.states = 1
        if op == 's_nop': self.states = int(ops[0], 0) + 1

def required(p, c):
    need = 0
    vw = {x for x in p.w if x[0] in 'va'}
    sw = {x for x in p.w if x[0] in ('s', 'vcc')}
    if p.is_mfma:
        tA = {2: 5, 4: 8, 8: 12, 16: 20}[p.passes]
        tC = {2: 4, 4: 6, 8: 10, 16: 18}[p.passes]
        if c.is_mfma:
            if vw & (c.srcA | c.srcB): need = max(need, tA)
            if vw & c.srcC:
                if not (c.srcC == vw and c.passes == p.passes): need = max(need, tC)
            elif vw & c.w: need = max(need, tC)
        else:
            if vw & (c.r | c.w): need = max(need, tA)
            if c.is_valu and (p.srcC & c.w): need = max(need, {2: 1, 4: 3, 8: 7, 16: 15}[p.passes])
        return need
    if p.is_valu:
        if c.is_mfma and (vw & c.r): need = max(need, 2)
        if c.is_mfma and ('exec', 0) in p.w: need = max(need, 4)
        if c.is_dpp and (vw & c.r): need = max(need, 2)
        if c.is_dpp and ('exec', 0) in p.w: need = max(need, 5)
        if c.is_permlane and (vw & c.r): need = max(need, 2)
        if c.is_permlane and ('exec', 0) in p.w: need = max(need, 4)
        if p.is_trans and c.is_valu and not c.is_trans and (vw & c.r): need = max(need, 1)
        if p.is_trans and (c.is_vmem or c.is_ds or c.is_mfma) and (vw & c.r): need = max(need, 2)
        if c.op.startswith(('v_readlane', 'v_readfirstlane')) and (vw & c.r): need = max(need, 1)
        if c.op.startswith(('v_readlane', 'v_readfirstlane', 'v_writelane')) and ('exec', 0) in p.w: need = max(need, 4)
        if sw:
            if c.is_vmem and (sw & c.r): need = max(need, 5)
            if c.is_valu and (sw & c.r):
                need = max(need, 4 if c.op.startswith(('v_readlane', 'v_writelane', 'v_div_fmas')) else 2)
            if c.is_salu and (sw & c.r): need = max(need, 1)
            if c.op.startswith(('s_cbranch_vcc',)) and ('vcc', 0) in sw: need = max(need, 1)
        if 'sdwa' in p.text or 'op_sel' in p.text and not p.op.startswith('v_pk'):
            if c.is_valu and (vw & (c.r | c.w)): need = max(need, 1)
        return need
    if p.is_vmem and ('store' in p.op) and ('x4' in p.op or 'x3' in p.op):
        data = regs_of(p.ops[0]) if p.op.startswith('buffer') else regs_of(p.ops[1])
        if data & c.w: need = max(need, 2 if c.is_valu else 1)
    if p.is_salu and ('m0', 0) in p.w and (c.is_vmem or c.is_ds) : need = max(need, 1)
    return need

class Kernel:
    def __init__(self):
        self.ins = []
    def __call__(self, text):
        for line in text.split('\n'):
            line = line.strip()
            if line: self.ins.append(Ins(line))
    def label(self, n): self.ins.append(Ins(n + ':'))
    def comment(self, c):
        i = Ins('s_nop 0'); i.text = '; ' + c; i.is_comment = True; i.states = 0; i.op = ''; i.is_salu = False; self.ins.append(i)
    def resolve(self):
        out = []
        W = 24
        def fix(hist, c):
            dist = 0; need = 0
            for p in reversed(hist):
                if getattr(p, 'is_comment', False) or p.is_label: continue
                n = required(p, c)
                if n > dist: need = max(need, n - dist)
                dist += p.states
                if dist >= W: break
            return need
        pend = {}
        alt = []
        for c in self.ins:
            if c.is_label:
                name = c.text.split(':')[0].strip()
                for hsnap in pend.pop(name, []): alt.append(list(hsnap))
                out.append(c); continue
            if getattr(c, 'is_comment', False):
                out.append(c); continue
            need = fix(out[-60:], c)
            for hh in alt: need = max(need, fix(hh, c))
            while need > 0:
                n = min(need, 16)
                nop = Ins(f's_nop {n-1}')
                out.append(nop)
                for hh in alt: hh.append(nop)
                need -= n
            out.append(c)
            for hh in alt: hh.append(c)
            alt = [hh for hh in alt if sum(x.states for x in hh[hh.base_len:] ) < W] if False else alt
            na = []
            for hh in alt:
                cnt = getattr(self, '_cnt', {})
                na.append(hh)
            alt = [hh[-60:] for hh in na][-6:]
            if c.is_branch and c.ops:
                tgt = c.ops[0]
                snaps = [out[-60:]] + [list(h) for h in alt]
                pend.setdefault(tgt, []).extend(snaps)
        labels = {x.text.split(':')[0].strip(): i for i, x in enumerate(out) if x.is_label}
        for i, c in enumerate(out):
            if c.is_branch and c.ops and c.ops[0] in labels and labels[c.ops[0]] < i:
                hist = out[max(0, i - 60): i + 1]
                j = labels[c.ops[0]]
                d = 0
                while d < W and j < len(out):
                    x = out[j]
                    if not x.is_label and not getattr(x, 'is_comment', False):
                        n = fix(hist, x)
                        assert n == 0, f"loop back-edge hazard at {x.text} (need {n}) via {c.text}"
                        hist = hist + [x]; d += x.states
                        if x.op in ('s_branch', 's_endpgm'): break
                    j += 1
        self.out = out
        return out
    def text(self):
        return '\n'.join(('' if x.is_label else '    ') + x.text for x in self.resolve())
```

```python
import sys
sys.path.insert(0, 'work')
from asmdsl import Kernel

NAME = "interleave_layers__spectral_gfnet__spectral_gfnet__prompt_kernel"

WS_SM   = 0x2000
WS_S0   = WS_SM
WS_M0   = WS_SM + 0x2000
WS_H2   = WS_SM + 0x4000
WS_H1   = 0x200000
WS_E0   = 0x1000000
WS_E1   = 0x1400000
WS_WA   = 0x1800000
WS_WB   = 0x2000000
WS_DBG  = 0x3000000
WS_SIZE = 0x8000000

RO_PLANE = 1216 * 4
RO_COMP  = 4 * RO_PLANE + 32
L_OPS  = 0
L_P    = 16384
L_FO   = 0
L_GX   = 32768
L_SM   = 49152
L_RQ   = L_OPS
L_RO   = 50176
L_WS   = L_RO + 39168
WSEG   = 2064
L_WI   = L_WS + 16640
L_REV  = L_WI + 24576
REV_C  = 4352
LDS_BYTES = L_REV + 4 * REV_C

V_TID, V_L, V_PI, V_H, V_PIF = 0, 1, 2, 3, 4
V_L16 = 5
V_T16 = 6
TF, TI, WU, DA, XS, OP, PP, RS, TMP = 32, 64, 96, 128, 160, 192, 208, 224, 240
A_F0, A_SAo, A_SAp, A_IBo, A_IBp, A_ID, A_XA, A_X0, A_WA, A_WB, A_WMA, A_WMB = 0, 24, 48, 72, 96, 120, 128, 144, 176, 192, 208, 224
A_R4 = 24
SRD_X, SRD_O, SRD_W, SRD_D, SRD_AR, SRD_AI, SRD_BR, SRD_BI = 4, 8, 12, 16, 20, 24, 28, 32
S_V, S_E, S_C, S_SP, S_LAY = 36, 37, 38, 39, 40
SPIN_MAX = 1 << 16

def vr(b, n): return f"v[{b}:{b+n-1}]"
def ar(b, n): return f"a[{b}:{b+n-1}]"
def sr(b, n): return f"s[{b}:{b+n-1}]"

def gen(stop=None, dump=None):
    k = Kernel()
    uid = [0]
    def lab(p):
        uid[0] += 1
        return f"L_{p}_{uid[0]}"

    def dbg_dump(regs, kind='v'):
        N = len(regs)
        k(f"s_lshl_b32 s41, s2, 2\ns_add_u32 s41, s41, s{S_V}\ns_mul_i32 s41, s41, {N*256}\ns_add_u32 s41, s41, {WS_DBG}")
        k(f"v_lshlrev_b32 v31, 2, v{V_L}")
        k("s_nop 15\ns_nop 15")
        for i, r in enumerate(regs):
            k(f"buffer_store_dword {kind}{r}, v31, {sr(SRD_W,4)}, s41 offen")
            k("s_add_u32 s41, s41, 256")
        k("s_waitcnt vmcnt(0)\ns_endpgm")

    def checkpoint(name, regs=None, kind='v'):
        if stop == name:
            if regs is not None: dbg_dump(regs, kind)
            else: k("s_waitcnt vmcnt(0) lgkmcnt(0)\ns_endpgm")
            return True
        return False

    def mfma(d, a, b, c):
        k(f"v_mfma_f32_32x32x16_bf16 {vr(d,16)}, {a}, {b}, {c}")

    def dft(dst, op, fam, data_is_A, inverse, acc, ts=(0, 1)):
        C, S, nS = fam, fam + 8, fam + 16
        s_re, s_im = (nS, S) if inverse else (S, nS)
        first = not acc
        for t in ts:
            xr, xi = vr(op + 4*t, 4), vr(op + 8 + 4*t, 4)
            seq = [(dst, xr, C), (dst + 16, xi, C), (dst, xi, s_re), (dst + 16, xr, s_im)]
            for n, (d, x, m) in enumerate(seq):
                cst = ar(m + 4*t, 4)
                cin = "0" if (first and t == ts[0] and n < 2) else vr(d, 16)
                if data_is_A: mfma(d, x, cst, cin)
                else: mfma(d, cst, x, cin)

    def cmul_pack(src, tab, op, conj):
        for p in range(8):
            re, im = vr(src + 2*p, 2), vr(src + 16 + 2*p, 2)
            c, s = vr(tab + 2*p, 2), vr(tab + 16 + 2*p, 2)
            t1, t2 = TMP + (p % 2) * 4, TMP + (p % 2) * 4 + 2
            k(f"v_pk_mul_f32 {vr(t1,2)}, {re}, {c}")
            k(f"v_pk_mul_f32 {vr(t2,2)}, {im}, {c}")
            if not conj:
                k(f"v_pk_fma_f32 {vr(t1,2)}, {im}, {s}, {vr(t1,2)}")
                k(f"v_pk_fma_f32 {vr(t2,2)}, {re}, {s}, {vr(t2,2)} neg_lo:[0,1,0] neg_hi:[0,1,0]")
            else:
                k(f"v_pk_fma_f32 {vr(t1,2)}, {im}, {s}, {vr(t1,2)} neg_lo:[0,1,0] neg_hi:[0,1,0]")
                k(f"v_pk_fma_f32 {vr(t2,2)}, {re}, {s}, {vr(t2,2)}")
            k(f"v_cvt_pk_bf16_f32 v{op+p}, v{t1}, v{t1+1}")
            k(f"v_cvt_pk_bf16_f32 v{op+8+p}, v{t2}, v{t2+1}")

    def angles(dst_c, dst_s, v_start, v_step, scale=None):
        for i in range(16):
            k(f"v_cos_f32 v{dst_c+i}, v{v_start}")
            k(f"v_sin_f32 v{dst_s+i}, v{v_start}")
            if i < 15: k(f"v_add_f32 v{v_start}, v{v_start}, v{v_step}")
        if scale is not None:
            for i in range(8):
                k(f"v_pk_mul_f32 {vr(dst_c+2*i,2)}, {vr(dst_c+2*i,2)}, {scale} op_sel_hi:[1,0]")
                k(f"v_pk_mul_f32 {vr(dst_s+2*i,2)}, {vr(dst_s+2*i,2)}, {scale} op_sel_hi:[1,0]")

    def family(fam, c, s, xmask=None):
        for p in range(8):
            k(f"v_cvt_pk_bf16_f32 v{TMP}, v{c+2*p}, v{c+2*p+1}")
            k(f"v_cvt_pk_bf16_f32 v{TMP+1}, v{s+2*p}, v{s+2*p+1}")
            k(f"v_cvt_pk_bf16_f32 v{TMP+2}, -v{s+2*p}, -v{s+2*p+1}")
            if xmask:
                for i in range(3): k(f"v_xor_b32 v{TMP+i}, {xmask}, v{TMP+i}")
            for i in range(3): k(f"v_accvgpr_write_b32 a{fam+8*i+p}, v{TMP+i}")

    def rne_bf16(dst, src):
        k(f"v_cvt_pk_bf16_f32 v{dst}, v{src}, v{src}")
        k(f"v_and_b32 v{dst}, 0xffff0000, v{dst}")

    def sd_from_var(v, t):
        k(f"v_max_f32 v{v}, 0, v{v}")
        rne_bf16(v, v)
        k(f"v_add_f32 v{v}, 0x3727c5ac, v{v}")
        rne_bf16(v, v)
        k(f"v_sqrt_f32 v{v}, v{v}")
        rne_bf16(v, v)

    def poll_flags(bit):
        L = lab("pf");
        mask = 0x01010101 * bit
        k(f"s_mov_b32 s46, 0\ns_mov_b32 s47, {mask}")
        k(f"v_lshlrev_b32 v30, 2, v{V_L}")
        k.label(L)
        k(f"buffer_load_dword v31, v30, {sr(SRD_D,4)}, 0 offen sc1")
        k("s_waitcnt vmcnt(0)")
        k("v_and_b32 v31, s47, v31")
        k("v_cmp_ne_u32 vcc, s47, v31")
        k(f"s_add_u32 s46, s46, 1\ns_cmp_ge_u32 s46, {SPIN_MAX}\ns_cbranch_scc1 L_fail")
        k(f"s_cbranch_vccnz {L}")

    def set_flag(val):
        L = lab("sf")
        k(f"s_cmp_lg_u32 s{S_V}, 0\ns_cbranch_scc1 {L}")
        k(f"v_mov_b32 v30, {val}\nv_mov_b32 v31, s2")
        k("s_mov_b64 exec, 1")
        k(f"buffer_store_byte v30, v31, {sr(SRD_D,4)}, 0 offen sc1")
        k("s_mov_b64 exec, -1")
        k.label(L)

    def poll_block(dst, soff, n=4, voff=V_T16, stride=4096, allw=False):
        L = lab("pb")
        k("s_mov_b32 s46, 0")
        k.label(L)
        for i in range(n):
            if stride * i < 4096:
                k(f"buffer_load_dwordx4 {vr(dst+4*i,4)}, v{voff}, {sr(SRD_W,4)}, {soff} offen offset:{stride*i} sc1")
            else:
                k(f"s_add_u32 s47, {soff}, {stride*i}")
                k(f"buffer_load_dwordx4 {vr(dst+4*i,4)}, v{voff}, {sr(SRD_W,4)}, s47 offen sc1")
        k("s_waitcnt vmcnt(0)")
        words = [dst + j for j in range(4*n)] if allw else [dst + 4*i + 3 for i in range(n)]
        k(f"v_max_u32 v31, v{words[0]}, v{words[1]}")
        rest = words[2:]
        while len(rest) >= 2:
            k(f"v_max3_u32 v31, v31, v{rest[0]}, v{rest[1]}"); rest = rest[2:]
        if rest: k(f"v_max_u32 v31, v31, v{rest[0]}")
        k("v_cmp_eq_u32 vcc, -1, v31")
        k(f"s_add_u32 s46, s46, 1\ns_cmp_ge_u32 s46, {SPIN_MAX}\ns_cbranch_scc1 L_fail")
        k("s_mov_b64 exec, vcc")
        k(f"s_cbranch_execnz {L}")
        k("s_mov_b64 exec, -1")

    def pinv(dst, src, t):
        k(f"v_and_b32 v{dst}, 3, v{src}")
        k(f"v_bfe_u32 v{t}, v{src}, 4, 1\nv_lshl_or_b32 v{dst}, v{t}, 2, v{dst}")
        k(f"v_bfe_u32 v{t}, v{src}, 2, 2\nv_lshl_or_b32 v{dst}, v{t}, 3, v{dst}")

    def init_block(soff_expr_s, n=4):
        for i in range(n):
            k(f"s_add_u32 s47, {soff_expr_s}, {4096*i}")
            k(f"buffer_store_dwordx4 v[24:27], v{V_T16}, {sr(SRD_W,4)}, s47 offen sc1")

    def wprep_load(srd_r, srd_i, dst):
        k(f"s_and_b32 s41, s2, 31\ns_lshl_b32 s41, s41, 1\ns_lshr_b32 s42, s2, 5\ns_lshl_b32 s42, s42, 2\ns_add_u32 s42, s42, s{S_V}\ns_lshl_b32 s42, s42, 6")
        k("s_add_u32 s42, s42, s41\ns_mul_i32 s42, s42, 1026")
        for a, srd in enumerate((srd_r, srd_i)):
            k(f"buffer_load_dwordx4 {vr(dst+8*a,4)}, v{V_L16}, {sr(srd,4)}, s42 offen")
            k(f"buffer_load_dwordx4 {vr(dst+8*a+4,4)}, v{V_L16}, {sr(srd,4)}, s42 offen offset:1024")
            k(f"buffer_load_dword v{dst+16+a}, off, {sr(srd,4)}, s42 offset:2048")
    def wprep_lds_write(src):
        k(f"s_mul_i32 s41, s{S_V}, {WSEG}\ns_add_u32 s41, s41, {L_WS}")
        k(f"v_add_u32 v30, s41, v{V_L16}\nv_mov_b32 v31, s41")
        for a in range(2):
            k(f"ds_write_b128 v30, {vr(src+8*a,4)} offset:{a*4*WSEG}")
            k(f"ds_write_b128 v30, {vr(src+8*a+4,4)} offset:{a*4*WSEG+1024}")
            k(f"ds_write_b32 v31, v{src+16+a} offset:{a*4*WSEG+2048}")
    def wprep_gather_store(wsbase, dst, hi=PP):
        k(f"v_lshrrev_b32 v28, 2, v{V_TID}")
        k(f"v_and_b32 v29, 1, v{V_TID}\nv_mul_u32_u24 v29, 1026, v29\nv_add_u32 v29, {L_WS}, v29")
        k(f"v_and_b32 v27, 2, v{V_TID}\nv_cmp_ne_u32 s[48:49], 0, v27")
        k(f"v_and_b32 v26, 3, v{V_TID}\nv_lshlrev_b32 v26, 4, v26\nv_lshl_add_u32 v26, v28, 14, v26")
        for kk in range(4):
            k(f"v_add_u32 v30, {kk*64}, v28")
            k("v_sub_u32 v31, 0x200, v30")
            if kk == 0:
                k("v_cmp_eq_u32 vcc, 0, v30\nv_mov_b32 v25, 0x100\nv_cndmask_b32 v31, v31, v25, vcc")
            k("v_cndmask_b32 v30, v30, v31, s[48:49]")
            k("v_lshl_add_u32 v30, v30, 1, v29")
            for i in range(4):
                k(f"ds_read_u16 v{dst+4*kk+i}, v30 offset:{i*WSEG}")
                k(f"ds_read_u16 v{hi+4*kk+i}, v30 offset:{(4+i)*WSEG}")
        for i in range(4):
            k(f"ds_read_u16 v{dst+16+i}, v29 offset:{i*WSEG+1024}")
            k(f"ds_read_u16 v{hi+16+i}, v29 offset:{(4+i)*WSEG+1024}")
        k(f"s_lshl_b32 s41, s2, 6\ns_add_u32 s41, s41, {wsbase}")
        for kk in range(4):
            k(f"s_waitcnt lgkmcnt({15 if kk < 3 else 8})")
            for i in range(4): k(f"v_lshl_or_b32 v{dst+4*kk+i}, v{hi+4*kk+i}, 16, v{dst+4*kk+i}")
            k(f"s_add_u32 s47, s41, {kk*64*16384}")
            k(f"buffer_store_dwordx4 {vr(dst+4*kk,4)}, v26, {sr(SRD_W,4)}, s47 offen sc1")
        k("s_waitcnt lgkmcnt(0)")
        L = lab("wx")
        k(f"s_cmp_lg_u32 s{S_V}, 0\ns_cbranch_scc1 {L}")
        for i in range(4): k(f"v_lshl_or_b32 v{dst+16+i}, v{hi+16+i}, 16, v{dst+16+i}")
        k(f"s_add_u32 s47, s41, {256*16384}")
        k("s_mov_b64 exec, 3")
        k(f"buffer_store_dwordx4 {vr(dst+16,4)}, v{V_T16}, {sr(SRD_W,4)}, s47 offen sc1")
        k("s_mov_b64 exec, -1")
        k.label(L)

    def wload_issue(wsbase, dst):
        k(f"s_lshl_b32 s41, s2, 14\ns_add_u32 s41, s41, {wsbase}")
        for i in range(4):
            k(f"s_add_u32 s47, s41, {4096*i}")
            k(f"buffer_load_dwordx4 {vr(dst+4*i,4)}, v{V_T16}, {sr(SRD_W,4)}, s47 offen sc1")
        L = lab("wl")
        k(f"s_cmp_lg_u32 s2, 0\ns_cbranch_scc1 {L}")
        for i in range(4):
            k(f"s_mov_b32 s47, {wsbase + 256*16384 + 4096*i}")
            k(f"buffer_load_dwordx4 {vr(dst+16+4*i,4)}, v{V_T16}, {sr(SRD_W,4)}, s47 offen sc1")
        k.label(L)
    def wload_lds_write(src):
        k(f"v_and_b32 v30, 3, v{V_TID}\nv_lshlrev_b32 v30, 12, v30")
        k(f"v_lshrrev_b32 v31, 2, v{V_TID}\nv_lshl_add_u32 v30, v31, 4, v30\nv_add_u32 v30, {L_WI}, v30")
        for kk in range(4):
            k(f"ds_write_b128 v30, {vr(src+4*kk,4)} offset:{kk*1024}")
        L = lab("ww")
        k(f"s_cmp_lg_u32 s2, 0\ns_cbranch_scc1 {L}")
        k(f"v_and_b32 v31, 2, v{V_TID}\nv_cmp_eq_u32 vcc, 0, v31\ns_and_saveexec_b64 s[44:45], vcc")
        for kk in range(4):
            k(f"ds_write_b128 v30, {vr(src+16+4*kk,4)} offset:{16384+kk*1024}")
        k("s_mov_b64 exec, s[44:45]")
        k.label(L)
    def wload_read(a_w, a_wm):
        T = DA
        k(f"s_lshl_b32 s41, s{S_V}, 12\ns_add_u32 s41, s41, {L_WI}")
        k(f"v_lshlrev_b32 v30, 11, v{V_H}\nv_lshl_add_u32 v30, v{V_PI}, 4, v30\nv_add_u32 v30, s41, v30")
        for gq in range(4):
            k(f"ds_read_b128 {vr(T+4*gq,4)}, v30 offset:{gq*512}")
        Ls, Le = lab("wsp"), lab("wse")
        k(f"s_cmp_lg_u32 s{S_SP}, 0\ns_cbranch_scc1 {Ls}")
        k("s_waitcnt lgkmcnt(0)")
        for r in range(16): k(f"v_accvgpr_write_b32 a{a_w+r}, v{T+r}")
        k(f"s_branch {Le}")
        k.label(Ls)
        for gq in range(4):
            k(f"ds_read_b128 {vr(T+16+4*gq,4)}, v30 offset:{16384+gq*512}")
        k(f"v_lshlrev_b32 v29, 9, v{V_H}\nv_add_u32 v29, v29, v{V_PI}\nv_add_u32 v29, s{S_E}, v29\nv_sub_u32 v29, 0x400, v29")
        for r in range(16):
            k(f"v_subrev_u32 v28, {32*r}, v29\nv_and_b32 v28, 0x3ff, v28")
            k("v_and_b32 v27, 31, v28\nv_lshlrev_b32 v27, 4, v27")
            k("v_bfe_u32 v26, v28, 5, 2\nv_lshl_add_u32 v27, v26, 2, v27")
            k("v_lshrrev_b32 v26, 7, v28\nv_lshl_add_u32 v27, v26, 9, v27\nv_add_u32 v27, s41, v27")
            k(f"ds_read_b32 v{PP+r}, v27")
            k(f"ds_read_b32 v{RS+r}, v27 offset:16384")
            if r % 4 == 3: k("s_waitcnt lgkmcnt(0)")
        for r in range(16):
            a, am, b, bm = T + r, PP + r, T + 16 + r, RS + r
            t = TMP
            k(f"v_lshlrev_b32 v{t}, 16, v{a}\nv_lshlrev_b32 v{t+1}, 16, v{am}\nv_add_f32 v{t}, v{t}, v{t+1}")
            k(f"v_and_b32 v{t+1}, 0xffff0000, v{a}\nv_and_b32 v{t+2}, 0xffff0000, v{am}\nv_sub_f32 v{t+1}, v{t+1}, v{t+2}")
            k(f"v_lshlrev_b32 v{t+2}, 16, v{b}\nv_lshlrev_b32 v{t+3}, 16, v{bm}\nv_add_f32 v{t+2}, v{t+2}, v{t+3}")
            k(f"v_and_b32 v{t+3}, 0xffff0000, v{b}\nv_and_b32 v{t+4}, 0xffff0000, v{bm}\nv_sub_f32 v{t+3}, v{t+3}, v{t+4}")
            k(f"v_add_f32 v{t+4}, v{t}, v{t+2}\nv_add_f32 v{t+5}, v{t+1}, v{t+3}\nv_sub_f32 v{t+6}, v{t}, v{t+2}\nv_sub_f32 v{t+7}, v{t+1}, v{t+3}")
            for j in range(4, 8): k(f"v_mul_f32 v{t+j}, 0x3e800000, v{t+j}")
            k(f"v_cvt_pk_bf16_f32 v{t}, v{t+4}, v{t+5}\nv_cvt_pk_bf16_f32 v{t+1}, v{t+6}, v{t+7}")
            k(f"v_accvgpr_write_b32 a{a_w+r}, v{t}\nv_accvgpr_write_b32 a{a_wm+r}, v{t+1}")
        k.label(Le)
    def w_unpack(a_w, dre, dim):
        for r in range(16):
            k(f"v_accvgpr_read_b32 v{dim+r}, a{a_w+r}")
        for r in range(16):
            k(f"v_lshlrev_b32 v{dre+r}, 16, v{dim+r}")
            k(f"v_and_b32 v{dim+r}, 0xffff0000, v{dim+r}")

    k(f"s_cmp_ge_u32 s2, 256\ns_cbranch_scc1 L_end")
    k("s_load_dwordx16 s[64:79], s[0:1], 0\ns_load_dwordx2 s[80:81], s[0:1], 64")
    k(f"v_and_b32 v{V_L}, 63, v0\nv_lshrrev_b32 v30, 6, v0")
    k(f"v_lshlrev_b32 v{V_T16}, 4, v0")
    k(f"v_readfirstlane_b32 s{S_V}, v30")
    k(f"v_lshrrev_b32 v{V_H}, 5, v{V_L}\nv_lshlrev_b32 v{V_L16}, 4, v{V_L}")
    k(f"v_and_b32 v{V_PI}, 3, v0\nv_bfe_u32 v30, v0, 3, 2\nv_lshl_or_b32 v{V_PI}, v30, 2, v{V_PI}\nv_bfe_u32 v30, v0, 2, 1\nv_lshl_or_b32 v{V_PI}, v30, 4, v{V_PI}")
    k(f"v_cvt_f32_u32 v{V_PIF}, v{V_PI}")
    k(f"s_and_b32 s{S_E}, s{S_V}, 1\ns_lshr_b32 s{S_C}, s{S_V}, 1")
    k(f"s_or_b32 s41, s2, s{S_C}\ns_cmp_eq_u32 s41, 0\ns_cselect_b32 s{S_SP}, 1, 0")
    for i in range(4): k(f"v_mov_b32 v{24+i}, -1")
    k("s_waitcnt lgkmcnt(0)")
    def srd(d, p, size):
        k(f"s_mov_b32 s{d}, s{p}\ns_mov_b32 s{d+1}, s{p+1}\ns_mov_b32 s{d+2}, {size}\ns_mov_b32 s{d+3}, 0x00020000")
    srd(SRD_W, 80, WS_SIZE); srd(SRD_X, 64, 4194304)
    k(f"s_lshl_b32 s41, s2, 14\ns_add_u32 s42, s41, {WS_E0}")
    init_block("s42")
    n_init = 4
    k(f"s_mul_i32 s43, s2, 160\ns_add_u32 s43, s43, {WS_SM}")
    k(f"v_cmp_gt_u32 vcc, 10, v0\nv_mov_b32 v30, 0x7ffffff0\nv_cndmask_b32 v30, v30, v{V_T16}, vcc")
    k(f"buffer_store_dwordx4 v[24:27], v30, {sr(SRD_W,4)}, s43 offen sc1")
    k(f"s_cmp_ge_u32 s2, 128\ns_cbranch_scc1 L_noh1\ns_add_u32 s42, s41, {WS_H1}")
    init_block("s42")
    k.label("L_noh1")
    k(f"s_lshr_b32 s41, s2, 5\ns_lshl_b32 s41, s41, 2\ns_add_u32 s41, s41, s{S_V}\ns_lshl_b32 s41, s41, 5\ns_and_b32 s42, s2, 31\ns_add_u32 s41, s41, s42")
    k("s_lshl_b32 s50, s41, 11\ns_add_u32 s51, s50, 0x200000")
    k(f"v_lshlrev_b32 v7, 6, v{V_PI}\nv_lshl_add_u32 v7, v{V_H}, 5, v7")
    for e in range(2):
        for t in range(2):
            k(f"buffer_load_dwordx4 {ar(A_XA+8*e+4*t,4)}, v7, {sr(SRD_X,4)}, s{50+e} offen offset:{16*t}")
    srd(SRD_O, 76, 4194304); srd(SRD_D, 78, 256)
    WB = 2048 * 513 * 2
    srd(SRD_AR, 66, WB); srd(SRD_AI, 68, WB); srd(SRD_BR, 72, WB); srd(SRD_BI, 74, WB)
    wprep_load(SRD_AR, SRD_AI, WU)
    k(f"v_mul_f32 v28, 0x3d000000, v{V_PIF}")
    k(f"v_cvt_f32_u32 v29, v{V_H}\nv_mul_f32 v29, 0x41800000, v29")
    k("v_mov_b32 v8, v29")
    k("v_mul_f32 v27, v28, v8")
    angles(DA, DA + 16, 27, 28)
    family(A_F0, DA, DA + 16)
    k(f"v_lshlrev_b32 v28, 4, v{V_H}\nv_sub_u32 v28, v{V_PI}, v28")
    k("v_mov_b32 v26, 0x3f80\nv_mov_b32 v27, 0x3f800000")
    for p in range(8):
        k(f"v_cmp_eq_u32 vcc, {2*p}, v28\nv_cndmask_b32 v30, 0, v26, vcc")
        k(f"v_cmp_eq_u32 vcc, {2*p+1}, v28\nv_cndmask_b32 v30, v30, v27, vcc")
        k(f"v_accvgpr_write_b32 a{A_ID+p}, v30")
    k(f"v_mul_f32 v28, 0x3a800000, v{V_PIF}\nv_mul_f32 v27, v28, v8")
    angles(TF, TF + 16, 27, 28)
    k("s_waitcnt vmcnt(10)\ns_barrier")
    set_flag(1)
    k("s_waitcnt vmcnt(6)")
    for e in range(2):
        mfma(XS + 16*e, ar(A_XA+8*e, 4), ar(A_ID, 4), "0")
    for e in range(2):
        mfma(XS + 16*e, ar(A_XA+8*e+4, 4), ar(A_ID+4, 4), vr(XS+16*e, 16))
    k("s_waitcnt vmcnt(0)")
    wprep_lds_write(WU)
    if checkpoint("r0_id", list(range(XS, XS+32))): return k
    k(f"v_readlane_b32 s52, v{XS}, 0\nv_readlane_b32 s54, v{XS+16}, 0")
    for p in range(8):
        for e in range(2):
            k(f"v_pk_add_f32 {vr(XS+16*e+2*p,2)}, {vr(XS+16*e+2*p,2)}, s[{52+2*e}:{53+2*e}] op_sel_hi:[1,0] neg_lo:[0,1] neg_hi:[0,1]")
    for e in range(2):
        x = XS + 16*e
        k(f"v_pk_add_f32 {vr(TMP+2*e,2)}, {vr(x,2)}, {vr(x+2,2)}")
        k(f"v_pk_mul_f32 {vr(TMP+4+2*e,2)}, {vr(x,2)}, {vr(x,2)}")
    for p in range(1, 8):
        for e in range(2):
            x = XS + 16*e + 2*p
            if p >= 2: k(f"v_pk_add_f32 {vr(TMP+2*e,2)}, {vr(TMP+2*e,2)}, {vr(x,2)}")
            k(f"v_pk_fma_f32 {vr(TMP+4+2*e,2)}, {vr(x,2)}, {vr(x,2)}, {vr(TMP+4+2*e,2)}")
    for i in range(4): k(f"v_add_f32 v{TMP+2*i}, v{TMP+2*i}, v{TMP+2*i+1}")
    S0, S1, Q0, Q1 = TMP, TMP+2, TMP+4, TMP+6
    k(f"v_permlane32_swap_b32 v{S0}, v{S1}\nv_permlane32_swap_b32 v{Q0}, v{Q1}")
    k(f"v_add_f32 v{S0}, v{S0}, v{S1}\nv_add_f32 v{Q0}, v{Q0}, v{Q1}")
    k(f"v_mov_b32 v{S1}, v{S0}\nv_mov_b32 v{Q1}, v{Q0}")
    k(f"v_permlane16_swap_b32 v{S0}, v{S1}\nv_permlane16_swap_b32 v{Q0}, v{Q1}")
    k(f"v_add_f32 v{S0}, v{S0}, v{S1}\nv_add_f32 v{Q0}, v{Q0}, v{Q1}")
    for sh in (8, 4, 2, 1):
        k(f"v_add_f32_dpp v{S0}, v{S0}, v{S0} row_ror:{sh} row_mask:0xf bank_mask:0xf")
        k(f"v_add_f32_dpp v{Q0}, v{Q0}, v{Q0} row_ror:{sh} row_mask:0xf bank_mask:0xf")
    PV, MN, MB = TMP+8, TMP+9, TMP+10
    k(f"v_mov_b32 v{PV}, s52\nv_mov_b32 v{MN}, s54\nv_cmp_eq_u32 vcc, 0, v{V_H}\nv_cndmask_b32 v{PV}, v{MN}, v{PV}, vcc")
    k(f"v_mul_f32 v{S0}, 0x3a800000, v{S0}")
    k(f"v_mul_f32 v{Q0}, 0x3a800000, v{Q0}")
    k(f"v_fma_f32 v{Q0}, -v{S0}, v{S0}, v{Q0}")
    k(f"v_add_f32 v{MN}, v{PV}, v{S0}")
    sd_from_var(Q0, Q1)
    rne_bf16(MB, MN)
    k(f"v_rcp_f32 v{S1}, v{Q0}")
    k(f"v_sub_f32 v{MB}, v{PV}, v{MB}")
    k(f"v_mul_f32 v{S1}, 0.5, v{S1}")
    k(f"v_mul_f32 v{MB}, v{MB}, v{S1}")
    k(f"v_mul_f32 v{MN}, 0x44800000, v{MN}")
    k(f"v_readlane_b32 s52, v{S1}, 0\nv_readlane_b32 s53, v{MB}, 0\nv_readlane_b32 s54, v{S1}, 32\nv_readlane_b32 s55, v{MB}, 32")
    k(f"s_lshl_b32 s41, s{S_V}, 2\ns_add_u32 s41, s41, {L_SM}\nv_lshlrev_b32 v30, 4, v{V_H}\nv_add_u32 v30, s41, v30")
    k(f"ds_write2_b32 v30, v{Q0}, v{MN} offset0:0 offset1:8")
    for p in range(8):
        for e in range(2):
            x = XS + 16*e + 2*p
            k(f"v_pk_fma_f32 {vr(x,2)}, {vr(x,2)}, s[{52+2*e}:{53+2*e}], s[{52+2*e}:{53+2*e}] op_sel:[0,0,1] op_sel_hi:[1,0,1]")
            k(f"v_cvt_pk_bf16_f32 v{OP+8*e+p}, v{x}, v{x+1}")
    if checkpoint("r0_ln", list(range(XS, XS+32))): return k
    dft(DA, OP, A_F0, True, False, False)
    k("s_waitcnt lgkmcnt(0)\ns_barrier")
    wprep_gather_store(WS_WA, WU)
    cmul_pack(DA, TF, OP, False)
    dft(XS, OP, A_F0, True, False, False)
    if checkpoint("r0_f2", list(range(XS, XS+32))): return k
    k(f"v_mul_u32_u24 v30, 144, v{V_PI}\nv_lshrrev_b32 v31, 4, v{V_PI}\nv_add_u32 v31, v31, v{V_H}\nv_lshl_add_u32 v30, v31, 6, v30")
    k(f"s_mul_i32 s41, s{S_V}, {RO_PLANE}\ns_add_u32 s41, s41, {L_RO}\nv_add_u32 v30, s41, v30")
    RA = RS
    k(f"v_lshrrev_b32 v28, 2, v{V_TID}")
    k(f"v_and_b32 v27, 2, v{V_TID}\nv_cmp_ne_u32 s[48:49], 0, v27")
    k(f"v_and_b32 v27, 1, v{V_TID}\nv_cmp_ne_u32 s[56:57], 0, v27")
    k(f"v_mul_u32_u24 v27, {RO_COMP}, v27\nv_add_u32 v27, {L_RO}, v27")
    def qaddr(dst, q, base, t):
        k(f"v_lshrrev_b32 v{t}, 5, v{q}\nv_mul_u32_u24 v{dst}, 144, v{t}\nv_lshrrev_b32 v{t}, 9, v{q}\nv_lshl_add_u32 v{dst}, v{t}, 6, v{dst}")
        k(f"v_and_b32 v{t}, 31, v{q}\nv_lshl_add_u32 v{dst}, v{t}, 2, v{dst}\nv_add_u32 v{dst}, v{dst}, v{base}")
    for kk in range(4):
        k(f"v_add_u32 v26, {kk*64}, v28\nv_sub_u32 v25, 0x200, v26")
        if kk == 0:
            k("v_cmp_eq_u32 vcc, 0, v26\nv_mov_b32 v24, 0x100\nv_cndmask_b32 v25, v25, v24, vcc")
        k("v_cndmask_b32 v26, v26, v25, s[48:49]")
        k("v_sub_u32 v25, 0x400, v26\nv_and_b32 v25, 0x3ff, v25")
        k("v_cndmask_b32 v24, v25, v26, s[56:57]\nv_cndmask_b32 v25, v26, v25, s[56:57]")
        qaddr(RA + kk, 24, 27, 23)
        qaddr(RA + 4 + kk, 25, 27, 23)
    A512 = (16*36 + 16) * 4
    k(f"v_cmp_gt_u32 vcc, 2, v{V_TID}\nv_sub_u32 v24, {2*L_RO + RO_COMP + A512}, v27\nv_cndmask_b32 v{RA+4}, v{RA+4}, v24, vcc")
    k("s_mov_b64 s[58:59], vcc")
    k(f"v_and_b32 v26, 3, v{V_TID}\nv_lshlrev_b32 v26, 4, v26\nv_lshl_add_u32 v9, v28, 14, v26")
    for comp in range(2):
        for gq in range(4):
            k(f"ds_write_b128 v30, {vr(XS+16*comp+4*gq,4)} offset:{comp*RO_COMP+16*gq}")
    k("s_waitcnt lgkmcnt(0)\ns_barrier")
    U = RO_PLANE // 256
    for kk in range(4):
        b = DA + 8*kk
        k(f"ds_read2st64_b32 {vr(b,2)}, v{RA+kk} offset0:0 offset1:{U}")
        k(f"ds_read2st64_b32 {vr(b+2,2)}, v{RA+kk} offset0:{2*U} offset1:{3*U}")
        k(f"ds_read2st64_b32 {vr(b+4,2)}, v{RA+4+kk} offset0:0 offset1:{U}")
        k(f"ds_read2st64_b32 {vr(b+6,2)}, v{RA+4+kk} offset0:{2*U} offset1:{3*U}")
    k(f"v_add_u32 v30, {L_SM}, v{V_T16}")
    k(f"ds_read_b128 {vr(PP,4)}, v30")
    poll_flags(1)
    k(f"s_lshl_b32 s41, s2, 6\ns_add_u32 s41, s41, {WS_E0}")
    k("s_waitcnt lgkmcnt(0)")
    for kk in range(4):
        b = DA + 8*kk; o = OP + 4*kk
        for hh in range(2):
            k(f"v_pk_add_f32 {vr(TMP+2*hh,2)}, {vr(b+2*hh,2)}, {vr(b+4+2*hh,2)}")
            k(f"v_pk_add_f32 {vr(TMP+4+2*hh,2)}, {vr(b+2*hh,2)}, {vr(b+4+2*hh,2)} neg_lo:[0,1] neg_hi:[0,1]")
        if kk == 0:
            k("s_mov_b64 exec, s[58:59]")
            for hh in range(2):
                k(f"v_pk_add_f32 {vr(TMP+2*hh,2)}, {vr(b+2*hh,2)}, {vr(b+2*hh,2)}")
                k(f"v_pk_add_f32 {vr(TMP+4+2*hh,2)}, {vr(b+4+2*hh,2)}, {vr(b+4+2*hh,2)}")
            k("s_mov_b64 exec, -1")
        for i in range(4): k(f"v_cvt_pk_bf16_f32 v{o+i}, v{TMP+2*i}, v{TMP+2*i+1}")
        k(f"v_min_u32 v{o+3}, -2, v{o+3}")
        k(f"s_add_u32 s47, s41, {kk*64*16384}")
        k(f"buffer_store_dwordx4 {vr(o,4)}, v9, {sr(SRD_W,4)}, s47 offen sc1")
    L = lab("st")
    k(f"s_cmp_lg_u32 s{S_V}, 0\ns_cbranch_scc1 {L}")
    k(f"s_and_b32 s42, s2, 31\ns_lshl_b32 s42, s42, 7\ns_lshr_b32 s43, s2, 5\ns_lshl_b32 s43, s43, 4\ns_add_u32 s42, s42, s43\ns_add_u32 s42, s42, {WS_S0}")
    k(f"v_lshlrev_b32 v30, 12, v{V_TID}")
    k(f"v_min_u32 v{PP+3}, -2, v{PP+3}")
    k("s_mov_b64 exec, 15")
    k(f"buffer_store_dwordx4 {vr(PP,4)}, v30, {sr(SRD_W,4)}, s42 offen sc1")
    k("s_mov_b64 exec, -1")
    k.label(L)
    k("s_barrier")
    set_flag(3)
    if checkpoint("r0_done"): return k
    wprep_load(SRD_BR, SRD_BI, WU)
    k(f"s_cmp_eq_u32 s{S_E}, 0\ns_cselect_b32 s60, 0, 0x80008000")
    k(f"v_cvt_f32_u32 v26, s{S_E}")
    k(f"v_fma_f32 v25, 2.0, v{V_PIF}, v26")
    k("v_mul_f32 v28, 0x3c800000, v25\nv_mul_f32 v27, v28, v8")
    angles(DA, DA + 16, 27, 28)
    family(A_SAp, DA, DA + 16)
    family(A_SAo, DA, DA + 16, "s60")
    k("v_mul_f32 v28, 0x3a000000, v25\nv_mul_f32 v27, v28, v8")
    angles(TF, TF + 16, 27, 28)
    k("v_fma_f32 v25, 2.0, v8, v26")
    k(f"v_mul_f32 v28, 0x3d000000, v{V_PIF}\nv_mul_f32 v27, v25, v{V_PIF}\nv_mul_f32 v27, 0x3c800000, v27")
    angles(DA, DA + 16, 27, 28)
    family(A_IBo, DA, DA + 16, "s60")
    k(f"v_mul_f32 v28, 0x3a800000, v{V_PIF}\nv_mul_f32 v27, v25, v{V_PIF}\nv_mul_f32 v27, 0x3a000000, v27")
    k("s_mov_b32 s62, 0x3a000000")
    angles(TI, TI + 16, 27, 28, scale="s[62:63]")
    k("v_sub_f32 v26, 1.0, v26\nv_fma_f32 v25, 2.0, v8, v26")
    k(f"v_mul_f32 v28, 0x3d000000, v{V_PIF}\nv_mul_f32 v27, v25, v{V_PIF}\nv_mul_f32 v27, 0x3c800000, v27")
    angles(DA, DA + 16, 27, 28)
    family(A_IBp, DA, DA + 16)
    k("s_waitcnt vmcnt(0)")
    wprep_lds_write(WU)
    k("s_waitcnt lgkmcnt(0)\ns_barrier")
    wprep_gather_store(WS_WB, WU)
    poll_flags(2)
    wload_issue(WS_WA, WU)
    k(f"s_lshl_b32 s41, s2, 14\ns_add_u32 s42, s41, {WS_E0}")
    poll_block(DA, "s42")
    wload_lds_write(WU)
    k(f"v_bfe_u32 v28, v{V_TID}, 2, 5")
    pinv(27, 28, 26)
    k(f"v_lshlrev_b32 v27, 4, v27\nv_lshrrev_b32 v26, 7, v{V_TID}\nv_lshl_add_u32 v27, v26, 3, v27")
    k(f"v_and_b32 v26, 3, v{V_TID}\nv_lshl_add_u32 v28, v26, 12, v27\nv_add_u32 v28, {L_OPS}, v28")
    k(f"v_xor_b32 v26, 1, v26\nv_lshl_add_u32 v27, v26, 12, v27\nv_add_u32 v27, {L_OPS+2048}, v27")
    for kk in range(4):
        off = (kk & 1) * 1024 + (kk >> 1) * 512
        k(f"ds_write_b64 v28, {vr(DA+4*kk,2)} offset:{off}")
        k(f"ds_write_b64 v27, {vr(DA+4*kk+2,2)} offset:{off}")
    k(f"v_lshlrev_b32 v10, 7, v{V_PI}\nv_lshl_add_u32 v10, v{V_H}, 6, v10")
    k(f"s_lshl_b32 s61, s{S_E}, 12\ns_add_u32 s42, s61, {WS_S0}")
    poll_block(RS, "s42", voff=10, stride=16)
    k("s_waitcnt lgkmcnt(0)\ns_barrier")
    set_flag(7)
    k(f"s_lshl_b32 s41, s{S_V}, 12\nv_add_u32 v11, s41, v{V_L16}")
    k(f"s_xor_b32 s41, s41, 4096\nv_add_u32 v12, s41, v{V_L16}")
    for i in range(4):
        k(f"ds_read_b128 {vr(OP+4*i,4)}, v11 offset:{L_OPS+1024*i}")
    k("s_waitcnt lgkmcnt(0)")
    for p in range(8):
        for comp in range(2):
            x = XS + 16*comp + 2*p
            k(f"v_lshlrev_b32 v{x}, 16, v{OP+8*comp+p}\nv_and_b32 v{x+1}, 0xffff0000, v{OP+8*comp+p}")
            k(f"v_pk_mul_f32 {vr(x,2)}, {vr(x,2)}, {vr(RS+2*p,2)}")
    L = lab("m0")
    k(f"s_cmp_eq_u32 s{S_SP}, 0\ns_cbranch_scc1 {L}")
    k(f"s_add_u32 s42, s61, {WS_M0}")
    poll_block(XS, "s42", voff=10, stride=16)
    k.label(L)
    for r in range(32): k(f"v_accvgpr_write_b32 a{A_X0+r}, v{XS+r}")
    wload_read(A_WA, A_WMA)
    w_unpack(A_WA, WU, WU + 16)
    for i in range(4): k(f"v_mov_b32 v{24+i}, -1")
    k(f"s_lshl_b32 s41, s2, 14\ns_add_u32 s42, s41, {WS_E1}")
    init_block("s42")
    k("s_cmp_ge_u32 s2, 128\ns_cbranch_scc1 L_noh2")
    for l in (1, 2):
        k(f"s_add_u32 s42, s41, {WS_H1 + l*0x200000}")
        init_block("s42")
    k.label("L_noh2")
    if checkpoint("c_init", list(range(XS, XS+32)) + list(range(WU, WU+32)) + list(range(OP, OP+16))): return k
    k(f"s_mov_b32 s{S_LAY}, 0")
    k.label("L_layer")
    k("s_barrier")
    for i in range(4):
        k(f"ds_read_b128 {vr(PP+4*i,4)}, v12 offset:{L_OPS+1024*i}")
    dft(DA, OP, A_SAo, True, False, False)
    L = lab("sub")
    k(f"s_cmp_lg_u32 s{S_LAY}, 3\ns_cbranch_scc1 {L}")
    for p in range(16):
        k(f"v_accvgpr_read_b32 v{TMP}, a{A_X0+2*p}\nv_accvgpr_read_b32 v{TMP+1}, a{A_X0+2*p+1}")
        k(f"v_pk_add_f32 {vr(XS+2*p,2)}, {vr(XS+2*p,2)}, {vr(TMP,2)} neg_lo:[0,1] neg_hi:[0,1]")
    k.label(L)
    k("s_waitcnt lgkmcnt(0)")
    dft(DA, PP, A_SAp, True, False, True)
    cmul_pack(DA, TF, OP, False)
    dft(DA, OP, A_F0, False, False, False)
    Ls, Le = lab("psp"), lab("pse")
    k(f"s_cmp_lg_u32 s{S_SP}, 0\ns_cbranch_scc1 {Ls}")
    cmul_pack(DA, WU, OP, True)
    k(f"s_branch {Le}")
    k.label(Ls)
    Lb, Lc = lab("wmb"), lab("wmc")
    k(f"s_bitcmp1_b32 s{S_LAY}, 0\ns_cbranch_scc1 {Lb}")
    w_unpack(A_WMA, PP, RS)
    k(f"s_branch {Lc}")
    k.label(Lb)
    w_unpack(A_WMB, PP, RS)
    k.label(Lc)
    k(f"s_mul_i32 s41, s{S_E}, {2*REV_C}\ns_add_u32 s41, s41, {L_REV}")
    k(f"v_lshlrev_b32 v30, 9, v{V_H}\nv_add_u32 v30, v30, v{V_PI}")
    k(f"v_add_u32 v29, s{S_E}, v30\nv_sub_u32 v29, {1024 - 15*32}, v29\nv_lshlrev_b32 v29, 2, v29\nv_add_u32 v29, s41, v29")
    k("v_lshlrev_b32 v30, 2, v30\nv_add_u32 v30, s41, v30")
    for comp in range(2):
        for r in range(16):
            k(f"ds_write_b32 v30, v{DA+16*comp+r} offset:{comp*REV_C+128*r}")
    k("s_mov_b64 exec, 1")
    for comp in range(2):
        k(f"ds_write_b32 v30, v{DA+16*comp} offset:{comp*REV_C+4096}")
    k("s_mov_b64 exec, -1")
    k("s_waitcnt lgkmcnt(0)")
    for p in range(8):
        t = TMP
        for j in range(2):
            r = 2*p + j
            k(f"ds_read_b32 v{t+8+j}, v29 offset:{128*(15-r)}")
            k(f"ds_read_b32 v{t+10+j}, v29 offset:{REV_C+128*(15-r)}")
        re, im = vr(DA+2*p, 2), vr(DA+16+2*p, 2)
        c, s = vr(WU+2*p, 2), vr(WU+16+2*p, 2)
        mc, ms = vr(PP+2*p, 2), vr(RS+2*p, 2)
        k(f"v_pk_mul_f32 {vr(t,2)}, {re}, {c}\nv_pk_mul_f32 {vr(t+2,2)}, {im}, {c}")
        k(f"v_pk_fma_f32 {vr(t,2)}, {im}, {s}, {vr(t,2)} neg_lo:[0,1,0] neg_hi:[0,1,0]")
        k(f"v_pk_fma_f32 {vr(t+2,2)}, {re}, {s}, {vr(t+2,2)}")
        k("s_waitcnt lgkmcnt(0)")
        er, ei = vr(t+8, 2), vr(t+10, 2)
        k(f"v_pk_fma_f32 {vr(t,2)}, {er}, {mc}, {vr(t,2)}\nv_pk_fma_f32 {vr(t+2,2)}, {er}, {ms}, {vr(t+2,2)}")
        k(f"v_pk_fma_f32 {vr(t,2)}, {ei}, {ms}, {vr(t,2)}")
        k(f"v_pk_fma_f32 {vr(t+2,2)}, {ei}, {mc}, {vr(t+2,2)} neg_lo:[0,1,0] neg_hi:[0,1,0]")
        k(f"v_cvt_pk_bf16_f32 v{OP+p}, v{t}, v{t+1}\nv_cvt_pk_bf16_f32 v{OP+8+p}, v{t+2}, v{t+3}")
    k.label(Le)
    dft(DA, OP, A_F0, True, True, False)
    cmul_pack(DA, TI, OP, True)
    for i in range(4):
        k(f"ds_write_b128 v11, {vr(OP+4*i,4)} offset:{L_GX+1024*i}")
    dft(XS, OP, A_IBo, False, True, True)
    k("s_waitcnt lgkmcnt(0)\ns_barrier")
    for i in range(4):
        k(f"ds_read_b128 {vr(PP+4*i,4)}, v12 offset:{L_GX+1024*i}")
    k("s_waitcnt lgkmcnt(0)")
    dft(XS, PP, A_IBp, False, True, True)
    if stop and stop.startswith("layer"):
        n = int(stop[5:])
        L = lab("ck")
        k(f"s_cmp_lg_u32 s{S_LAY}, {n}\ns_cbranch_scc1 {L}")
        dbg_dump(list(range(XS, XS+32)))
        k.label(L)
    k(f"s_cmp_eq_u32 s{S_LAY}, 3\ns_cbranch_scc1 L_final")
    Ls, Le = lab("pps"), lab("ppe")
    k(f"s_cmp_lg_u32 s{S_SP}, 0\ns_cbranch_scc1 {Ls}")
    for p in range(8):
        k(f"v_pk_mul_f32 {vr(DA+2*p,2)}, {vr(XS+2*p,2)}, {vr(XS+2*p,2)}")
        k(f"v_pk_fma_f32 {vr(DA+2*p,2)}, {vr(XS+16+2*p,2)}, {vr(XS+16+2*p,2)}, {vr(DA+2*p,2)}")
    k(f"s_branch {Le}")
    k.label(Ls)
    for p in range(8):
        k(f"v_pk_mul_f32 {vr(DA+2*p,2)}, {vr(XS+16+2*p,2)}, {vr(XS+16+2*p,2)}")
        k(f"v_pk_mul_f32 {vr(DA+2*p,2)}, {vr(DA+2*p,2)}, 0.5 op_sel_hi:[1,0]")
    k.label(Le)
    for i in range(4):
        k(f"ds_write_b128 v11, {vr(DA+4*i,4)} offset:{L_P+1024*i}")
    k(f"v_and_b32 v30, 3, v{V_TID}\nv_lshlrev_b32 v30, 10, v30\nv_lshrrev_b32 v31, 2, v{V_TID}\nv_lshl_add_u32 v30, v31, 4, v30")
    k(f"s_lshl_b32 s41, s{S_LAY}, 21\ns_lshl_b32 s42, s2, 6\ns_add_u32 s41, s41, s42\ns_add_u32 s41, s41, {WS_H1}")
    k("s_waitcnt vmcnt(0) lgkmcnt(0)\ns_barrier")
    for e in range(2):
        k(f"ds_read_b128 {vr(DA+8*e,4)}, v30 offset:{L_P+4096*e}")
        k(f"ds_read_b128 {vr(DA+8*e+4,4)}, v30 offset:{L_P+4096*(2+e)}")
    for e in range(2):
        k(f"s_waitcnt lgkmcnt({2*(1-e)})")
        for hh in range(2):
            k(f"v_pk_add_f32 {vr(DA+8*e+2*hh,2)}, {vr(DA+8*e+2*hh,2)}, {vr(DA+8*e+4+2*hh,2)}")
        k(f"v_min_u32 v{DA+8*e+3}, -2, v{DA+8*e+3}")
        k(f"s_add_u32 s47, s41, {e*64*16384}")
        k(f"buffer_store_dwordx4 {vr(DA+8*e,4)}, v9, {sr(SRD_W,4)}, s47 offen sc1")
    L1, L2, L3 = lab("w1"), lab("w2"), lab("w3")
    k(f"s_cmp_lg_u32 s{S_LAY}, 0\ns_cbranch_scc1 {L1}")
    poll_flags(4)
    wload_issue(WS_WB, WU)
    k("s_waitcnt vmcnt(0)")
    wload_lds_write(WU)
    k("s_waitcnt lgkmcnt(0)\ns_barrier")
    wload_read(A_WB, A_WMB)
    k.label(L1)
    k(f"s_bitcmp1_b32 s{S_LAY}, 0\ns_cbranch_scc1 {L2}")
    w_unpack(A_WB, WU, WU + 16)
    k(f"s_branch {L3}")
    k.label(L2)
    w_unpack(A_WA, WU, WU + 16)
    k.label(L3)
    Lr = lab("red")
    k(f"s_cmp_ge_u32 s2, 128\ns_cbranch_scc1 {Lr}")
    k(f"s_lshl_b32 s41, s{S_LAY}, 21\ns_lshl_b32 s42, s2, 14\ns_add_u32 s41, s41, s42\ns_add_u32 s42, s41, {WS_H1}")
    poll_block(DA, "s42")
    for hh in range(2):
        k(f"v_pk_add_f32 {vr(DA+2*hh,2)}, {vr(DA+2*hh,2)}, {vr(DA+4+2*hh,2)}")
        k(f"v_pk_add_f32 {vr(DA+8+2*hh,2)}, {vr(DA+8+2*hh,2)}, {vr(DA+12+2*hh,2)}")
    for hh in range(2):
        k(f"v_pk_add_f32 {vr(DA+2*hh,2)}, {vr(DA+2*hh,2)}, {vr(DA+8+2*hh,2)}")
    k(f"v_permlane32_swap_b32 v{DA}, v{DA+1}\nv_permlane32_swap_b32 v{DA+2}, v{DA+3}")
    k(f"v_add_f32 v{DA}, v{DA}, v{DA+1}\nv_add_f32 v{DA+2}, v{DA+2}, v{DA+3}")
    k(f"v_permlane16_swap_b32 v{DA}, v{DA+2}")
    k(f"v_add_f32 v{DA}, v{DA}, v{DA+2}")
    k(f"v_add_f32_dpp v{DA}, v{DA}, v{DA} row_ror:8 row_mask:0xf bank_mask:0xf")
    k(f"v_add_f32_dpp v{DA}, v{DA}, v{DA} row_ror:4 row_mask:0xf bank_mask:0xf")
    k(f"v_and_b32 v30, 3, v{V_L}\nv_lshlrev_b32 v30, 2, v30\nv_bfe_u32 v31, v{V_L}, 4, 1\nv_lshl_add_u32 v30, v31, 1, v30\nv_add_u32 v30, v30, v{V_H}")
    k(f"v_lshlrev_b32 v30, 4, v30\ns_lshl_b32 s41, s{S_V}, 2\ns_add_u32 s41, s41, {L_SM+256}\nv_add_u32 v30, s41, v30")
    k(f"ds_write_b32 v30, v{DA}")
    k("s_waitcnt lgkmcnt(0)\ns_barrier")
    Lr2 = lab("red2")
    k(f"s_cmp_lg_u32 s{S_V}, 0\ns_cbranch_scc1 {Lr2}")
    k(f"v_and_b32 v30, 15, v{V_L}\nv_lshlrev_b32 v31, 4, v30\nv_lshlrev_b32 v30, 2, v30")
    k(f"ds_read_b128 {vr(DA,4)}, v31 offset:{L_SM+256}")
    k("s_and_b32 s41, s2, 3\ns_lshr_b32 s42, s2, 3\ns_and_b32 s42, s42, 3\ns_lshl_b32 s42, s42, 2\ns_or_b32 s41, s41, s42")
    k("s_lshr_b32 s42, s2, 2\ns_and_b32 s42, s42, 1\ns_lshl_b32 s42, s42, 4\ns_or_b32 s41, s41, s42\ns_lshl_b32 s41, s41, 7")
    k("s_lshr_b32 s42, s2, 5\ns_and_b32 s42, s42, 1\ns_lshl_b32 s42, s42, 6\ns_add_u32 s41, s41, s42")
    k("s_lshr_b32 s42, s2, 6\ns_lshl_b32 s42, s42, 12\ns_add_u32 s41, s41, s42")
    k(f"s_lshl_b32 s42, s{S_LAY}, 13\ns_add_u32 s41, s41, s42\ns_add_u32 s41, s41, {WS_H2}")
    k("s_waitcnt lgkmcnt(0)")
    k(f"v_pk_add_f32 {vr(DA,2)}, {vr(DA,2)}, {vr(DA+2,2)}\nv_add_f32 v{DA}, v{DA}, v{DA+1}")
    k(f"v_mul_f32 v{DA}, 0x36000000, v{DA}")
    sd_from_var(DA, DA+1)
    k(f"v_rcp_f32 v{DA}, v{DA}")
    k(f"v_min_u32 v{DA}, -2, v{DA}")
    k("s_mov_b64 exec, 0xffff")
    k(f"buffer_store_dword v{DA}, v30, {sr(SRD_W,4)}, s41 offen sc1")
    k("s_mov_b64 exec, -1")
    k.label(Lr2)
    k.label(Lr)
    L = lab("dc")
    k(f"s_cmp_eq_u32 s{S_SP}, 0\ns_cbranch_scc1 {L}")
    k("s_mov_b32 s62, 0x3a800000\ns_mov_b32 s63, 0xc4800000")
    for p in range(8):
        k(f"v_pk_mul_f32 {vr(TMP,2)}, {vr(XS+2*p,2)}, s[62:63] op_sel_hi:[1,0]")
        k(f"v_cvt_pk_bf16_f32 v{TMP+1}, v{TMP}, v{TMP+1}")
        k(f"v_lshlrev_b32 v{TMP}, 16, v{TMP+1}\nv_and_b32 v{TMP+1}, 0xffff0000, v{TMP+1}")
        k(f"v_pk_fma_f32 {vr(PP+2*p,2)}, {vr(TMP,2)}, s[62:63], {vr(XS+2*p,2)} op_sel:[0,1,0] op_sel_hi:[1,1,1]")
    k.label(L)
    k(f"s_lshl_b32 s42, s{S_LAY}, 13\ns_add_u32 s42, s42, s61\ns_add_u32 s42, s42, {WS_H2}")
    poll_block(RS, "s42", voff=10, stride=16, allw=True)
    Ls, Le = lab("scs"), lab("sce")
    k(f"s_cmp_lg_u32 s{S_SP}, 0\ns_cbranch_scc1 {Ls}")
    for p in range(8):
        k(f"v_pk_mul_f32 {vr(TMP,2)}, {vr(XS+2*p,2)}, {vr(RS+2*p,2)}")
        k(f"v_cvt_pk_bf16_f32 v{OP+p}, v{TMP}, v{TMP+1}")
    k(f"s_branch {Le}")
    k.label(Ls)
    for p in range(8):
        k(f"v_pk_mul_f32 {vr(TMP,2)}, {vr(PP+2*p,2)}, {vr(RS+2*p,2)}")
        k(f"v_cvt_pk_bf16_f32 v{OP+p}, v{TMP}, v{TMP+1}")
    k.label(Le)
    for p in range(8):
        k(f"v_pk_mul_f32 {vr(TMP+2,2)}, {vr(XS+16+2*p,2)}, {vr(RS+2*p,2)}")
        k(f"v_cvt_pk_bf16_f32 v{OP+8+p}, v{TMP+2}, v{TMP+3}")
    for i in range(4):
        k(f"ds_write_b128 v11, {vr(OP+4*i,4)} offset:{L_OPS+1024*i}")
    k(f"s_add_u32 s{S_LAY}, s{S_LAY}, 1")
    k("s_waitcnt lgkmcnt(0)")
    k("s_branch L_layer")
    k.label("L_final")
    k(f"s_lshl_b32 s41, s{S_V}, 13\nv_add_u32 v30, s41, v{V_L16}")
    for comp in range(2):
        for gq in range(4):
            k(f"ds_write_b128 v30, {vr(XS+16*comp+4*gq,4)} offset:{L_FO+comp*4096+gq*1024}")
    k(f"v_lshrrev_b32 v28, 2, v{V_TID}")
    k("v_and_b32 v27, 3, v28\nv_bfe_u32 v26, v28, 3, 2\nv_lshl_or_b32 v27, v26, 2, v27\nv_bfe_u32 v26, v28, 2, 1\nv_lshl_or_b32 v27, v26, 4, v27")
    k("v_lshrrev_b32 v26, 5, v28\nv_lshl_add_u32 v27, v26, 7, v27\nv_lshlrev_b32 v27, 14, v27")
    k(f"v_and_b32 v26, 3, v{V_TID}\nv_lshl_add_u32 v27, v26, 4, v27")
    k(f"v_lshlrev_b32 v29, 2, v{V_TID}")
    k(f"s_lshl_b32 s41, s2, 6\ns_add_u32 s41, s41, {WS_E1}")
    k("s_waitcnt lgkmcnt(0)\ns_barrier")
    def fo(v, comp, kk): return (L_FO + v*8192 + comp*4096 + kk*1024) // 256
    for kk in range(4):
        b = DA + 8*kk
        k(f"ds_read2st64_b32 {vr(b,2)}, v29 offset0:{fo(0,0,kk)} offset1:{fo(2,0,kk)}")
        k(f"ds_read2st64_b32 {vr(b+2,2)}, v29 offset0:{fo(1,1,kk)} offset1:{fo(3,1,kk)}")
        k(f"ds_read2st64_b32 {vr(b+4,2)}, v29 offset0:{fo(0,1,kk)} offset1:{fo(2,1,kk)}")
        k(f"ds_read2st64_b32 {vr(b+6,2)}, v29 offset0:{fo(1,0,kk)} offset1:{fo(3,0,kk)}")
    Ls, Le = lab("fos"), lab("foe")
    for sp in (0, 1):
        if sp == 0: k(f"s_cmp_eq_u32 s2, 0\ns_cbranch_scc1 {Ls}")
        else: k.label(Ls)
        for kk in range(4):
            b = DA + 8*kk; o = OP + 4*kk; t = TMP
            k(f"s_waitcnt lgkmcnt({4*(3-kk)})")
            k(f"v_pk_add_f32 {vr(t,2)}, {vr(b,2)}, {vr(b+2,2)} neg_lo:[0,1] neg_hi:[0,1]")
            k(f"v_pk_add_f32 {vr(t+2,2)}, {vr(b+4,2)}, {vr(b+6,2)}")
            k(f"v_pk_add_f32 {vr(t+4,2)}, {vr(b,2)}, {vr(b+2,2)}")
            k(f"v_pk_add_f32 {vr(t+6,2)}, {vr(b+6,2)}, {vr(b+4,2)} neg_lo:[0,1] neg_hi:[0,1]")
            if sp == 0:
                k(f"v_cvt_pk_bf16_f32 v{o}, v{t}, v{t+2}")
                k(f"v_cvt_pk_bf16_f32 v{o+1}, v{t+5}, v{t+7}")
                k(f"v_cvt_pk_bf16_f32 v{o+2}, v{t+1}, v{t+3}")
                k(f"v_cvt_pk_bf16_f32 v{o+3}, v{t+4}, v{t+6}")
            else:
                k(f"v_cvt_pk_bf16_f32 v{o}, v{b}, v{b+6}")
                k(f"v_cvt_pk_bf16_f32 v{o+1}, v{b+4}, v{b+2}")
                k(f"v_cvt_pk_bf16_f32 v{o+2}, v{t+1}, v{t+3}")
                k(f"v_cvt_pk_bf16_f32 v{o+3}, v{t+5}, v{t+7}")
            k(f"v_min_u32 v{o+3}, -2, v{o+3}")
            k(f"s_add_u32 s47, s41, {kk*32*16384}")
            k(f"buffer_store_dwordx4 {vr(o,4)}, v27, {sr(SRD_W,4)}, s47 offen sc1")
        if sp == 0: k(f"s_branch {Le}")
    k.label(Le)
    if checkpoint("e1"): return k
    k(f"v_mul_f32 v28, 0x3d000000, v{V_PIF}\nv_mul_f32 v27, v28, v8\nv_mul_f32 v27, 0.5, v27")
    k("s_mov_b32 s62, 0x3a800000")
    for n in range(8):
        k(f"v_cos_f32 v{DA+n}, v27\nv_sin_f32 v{DA+16+n}, v27")
        k(f"v_fma_f32 v26, 0.5, v{V_PIF}, v27")
        k(f"v_cos_f32 v{DA+8+n}, v26\nv_sin_f32 v{DA+24+n}, v26")
        if n < 7: k("v_add_f32 v27, v27, v28")
    for i in range(16):
        k(f"v_pk_mul_f32 {vr(DA+2*i,2)}, {vr(DA+2*i,2)}, s[62:63] op_sel_hi:[1,0]")
    for u in range(4):
        for e2 in range(2):
            for f in range(2):
                n = 2*u + e2 + 8*f
                c, s = DA + n, DA + 16 + n
                k(f"v_cvt_pk_bf16_f32 v{TMP}, v{c}, -v{s}\nv_cvt_pk_bf16_f32 v{TMP+1}, v{s}, v{c}")
                k(f"v_accvgpr_write_b32 a{A_R4+4*u+2*e2+f}, v{TMP}\nv_accvgpr_write_b32 a{A_R4+16+4*u+2*e2+f}, v{TMP+1}")
    k(f"v_mul_f32 v28, 0x3a800000, v{V_PIF}\nv_mul_f32 v27, v28, v8")
    angles(TF, TF + 16, 27, 28)
    for e in range(2):
        mfma(XS + 16*e, ar(A_ID, 4), ar(A_XA+8*e, 4), "0")
    for e in range(2):
        mfma(XS + 16*e, ar(A_ID+4, 4), ar(A_XA+8*e+4, 4), vr(XS+16*e, 16))
    k(f"v_lshrrev_b32 v28, 2, v{V_TID}\nv_and_b32 v29, 3, v{V_TID}\nv_lshlrev_b32 v29, 12, v29\nv_add_u32 v29, {L_RQ}, v29")
    def rqaddr(dst, j):
        k(f"v_and_b32 v25, 31, v{j}")
        pinv(24, 25, 23)
        k(f"v_lshl_add_u32 v{dst}, v24, 4, v29")
        k(f"v_bfe_u32 v24, v{j}, 5, 1\nv_lshl_add_u32 v{dst}, v24, 3, v{dst}")
        k(f"v_bfe_u32 v24, v{j}, 6, 2\nv_lshl_add_u32 v{dst}, v24, 10, v{dst}")
        k(f"v_bfe_u32 v24, v{j}, 8, 1\nv_lshl_add_u32 v{dst}, v24, 9, v{dst}")
    rqaddr(RS, 28)
    for kk in range(4):
        k(f"v_add_u32 v26, {kk*64}, v28\nv_sub_u32 v27, 0x200, v26")
        if kk == 0:
            k("v_cmp_eq_u32 vcc, 0, v26\nv_mov_b32 v24, 0x100\nv_cndmask_b32 v27, v27, v24, vcc")
        rqaddr(RS + 1 + kk, 27)
    k(f"s_lshl_b32 s41, s2, 14\ns_add_u32 s42, s41, {WS_E1}")
    poll_block(DA, "s42")
    for kk in range(4):
        k(f"ds_write_b64 v{RS}, {vr(DA+4*kk,2)} offset:{kk*1024}")
        k(f"ds_write_b64 v{RS+1+kk}, {vr(DA+4*kk+2,2)}")
    k("s_waitcnt lgkmcnt(0)\ns_barrier")
    for u in range(4):
        k(f"ds_read_b128 {vr(OP+4*u,4)}, v11 offset:{L_RQ+1024*u}")
    for u in range(4):
        k(f"s_waitcnt lgkmcnt({3-u})")
        mfma(DA, vr(OP+4*u, 4), ar(A_R4+4*u, 4), "0" if u == 0 else vr(DA, 16))
        mfma(DA+16, vr(OP+4*u, 4), ar(A_R4+16+4*u, 4), "0" if u == 0 else vr(DA+16, 16))
    cmul_pack(DA, TF, OP, True)
    dft(XS, OP, A_F0, True, True, True)
    for e in range(2):
        for p in range(8):
            k(f"v_cvt_pk_bf16_f32 v{OP+8*e+p}, v{XS+16*e+2*p}, v{XS+16*e+2*p+1}")
        for t in range(2):
            k(f"buffer_store_dwordx4 {vr(OP+8*e+4*t,4)}, v7, {sr(SRD_O,4)}, s{50+e} offen offset:{16*t}")
    k("s_endpgm")
    return k

HEADER = """; Kernarg layout for this problem (72 bytes, ptrs only, base s[0:1]):
"""

def emit(stop=None, listform=True):
    k = gen(stop)
    k.label("L_fail")
    k("s_mov_b64 exec, -1\ns_waitcnt vmcnt(0) lgkmcnt(0)")
    k.label("L_end")
    k("s_endpgm")
    body = k.text()
    launch = f"; @launch kernel={NAME} grid=(256,1,1) block=(256,1,1) lds={LDS_BYTES}" if listform else f"; @launch grid=(256,1,1) block=(256,1,1) lds={LDS_BYTES}"
    return f"""{HEADER}{launch}
.amdgcn_target "amdgcn-amd-amdhsa--gfx950"
.text
.globl {NAME}
.p2align 8
.type {NAME},@function
{NAME}:
{body}
.section .rodata,"a"
.p2align 6
.amdhsa_kernel {NAME}
  .amdhsa_next_free_vgpr 512
  .amdhsa_next_free_sgpr 96
  .amdhsa_accum_offset 256
  .amdhsa_group_segment_fixed_size 0
  .amdhsa_kernarg_size 72
  .amdhsa_user_sgpr_count 2
  .amdhsa_user_sgpr_kernarg_segment_ptr 1
  .amdhsa_system_sgpr_workgroup_id_x 1
.end_amdhsa_kernel
"""

if __name__ == "__main__":
    stop = sys.argv[2] if len(sys.argv) > 2 else None
    open(sys.argv[1], "w").write(emit(stop))
```

```python
import sys
sys.path.insert(0, 'work')
from asmdsl import Kernel

NAME = "interleave_layers__spectral_gfnet__spectral_gfnet__prompt_kernel"

NREP    = 8
WS_SM   = 0x40000
WS_S0   = WS_SM
WS_M0   = WS_SM + 0x2000
WS_V0   = WS_SM + 0x4000
WS_H2   = WS_SM + 0x6000
SM_BYTES = 0x6000 + 3 * NREP * 0x2000
WS_H1   = 0x200000
WS_E0   = 0x1000000
WS_E1   = 0x1400000
WS_WA   = 0x1800000
WS_WB   = 0x2000000
WS_DBG  = 0x3000000
WS_SIZE = 0x8000000

RO_PLANE = 1216 * 4
RO_COMP  = 4 * RO_PLANE + 32
L_OPS  = 0
L_AX   = 16384
L_SM   = 49152
L_RQ   = L_OPS
L_RO   = 50176
WSEG   = 528
L_WS   = L_RO + 39168
L_WS2  = L_WS + 16896
L_REV  = L_WS2 + 16896
REV_C  = 4352
LDS_BYTES = L_REV + 4 * REV_C

V_TID, V_L, V_PI, V_H, V_PIF, V_L16, V_T16 = 0, 1, 2, 3, 4, 5, 6
V_XO, V_H16, V_SC, V_OWN, V_QT = 7, 8, 9, 10, 11
P0 = 12
TF, TI, WU, DA, BA, WM, OP, TMP = 32, 64, 96, 128, 160, 192, 224, 240
RS = TMP + 8
A_F0, A_SA, A_IB, A_ID, A_XA, A_XH, A_WA, A_WB, A_WMA, A_WMB, A_R4 = 0, 24, 48, 72, 80, 96, 128, 144, 160, 176, 192
A_LB = 224
SRD_X, SRD_O, SRD_W, SRD_D, SRD_AR, SRD_AI, SRD_BR, SRD_BI = 4, 8, 12, 16, 20, 24, 28, 32
S_V, S_E, S_C, S_SP, S_LAY = 36, 37, 38, 39, 40
SPIN_MAX = 1 << 16
CODE_BYTES = 24576

def vr(b, n): return f"v[{b}:{b+n-1}]"
def ar(b, n): return f"a[{b}:{b+n-1}]"
def sr(b, n): return f"s[{b}:{b+n-1}]"

STAMPS = []
def gen(stop=None, prof=False):
    k = Kernel()
    uid = [0]
    STAMPS.clear()
    def lab(p):
        uid[0] += 1
        return f"L_{p}_{uid[0]}"
    def stamp(name, loop=False):
        if not prof: return
        k("s_memrealtime s[84:85]\ns_waitcnt lgkmcnt(0)")
        if loop:
            idx = len([x for x in STAMPS if x[1]])
            STAMPS.append((name, True))
            k(f"s_mul_i32 s86, s{S_LAY}, 10\ns_add_u32 s86, s86, {24+idx}\ns_mov_b32 m0, s86\ns_nop 0\nv_writelane_b32 v22, s84, m0")
        else:
            idx = len([x for x in STAMPS if not x[1]])
            STAMPS.append((name, False))
            k(f"v_writelane_b32 v22, s84, {idx}")
    def dbg_dump(regs, kind='v'):
        N = len(regs)
        k(f"s_lshl_b32 s41, s2, 2\ns_add_u32 s41, s41, s{S_V}\ns_mul_i32 s41, s41, {N*256}\ns_add_u32 s41, s41, {WS_DBG}")
        k(f"v_lshlrev_b32 v31, 2, v{V_L}")
        k("s_nop 15\ns_nop 15")
        for r in regs:
            k(f"buffer_store_dword {kind}{r}, v31, {sr(SRD_W,4)}, s41 offen")
            k("s_add_u32 s41, s41, 256")
        k("s_waitcnt vmcnt(0)\ns_endpgm")
    def checkpoint(name, regs=None, kind='v'):
        if stop == name:
            if regs is not None: dbg_dump(regs, kind)
            else: k("s_waitcnt vmcnt(0) lgkmcnt(0)\ns_endpgm")
            return True
        return False
    def mfma(d, a, b, c): k(f"v_mfma_f32_32x32x16_bf16 {vr(d,16)}, {a}, {b}, {c}")
    def dft(dst, op, fam, data_is_A, inverse, acc, filler=None):
        C, S, nS = fam, fam + 8, fam + 16
        s_re, s_im = (nS, S) if inverse else (S, nS)
        cnt = 0
        for t in (0, 1):
            xr, xi = vr(op + 4*t, 4), vr(op + 8 + 4*t, 4)
            for n, (d, x, m) in enumerate([(dst, xr, C), (dst + 16, xi, C), (dst, xi, s_re), (dst + 16, xr, s_im)]):
                cst = ar(m + 4*t, 4)
                cin = "0" if (not acc and t == 0 and n < 2) else vr(d, 16)
                if data_is_A: mfma(d, x, cst, cin)
                else: mfma(d, cst, x, cin)
                if filler: filler(cnt)
                cnt += 1
    NEG2 = "neg_lo:[0,1,0] neg_hi:[0,1,0]"
    def cmul_pack(src, tab, op, conj):
        for p in range(8):
            re, im = vr(src + 2*p, 2), vr(src + 16 + 2*p, 2)
            c, s = vr(tab + 2*p, 2), vr(tab + 16 + 2*p, 2)
            t1, t2 = TMP + (p % 2) * 4, TMP + (p % 2) * 4 + 2
            k(f"v_pk_mul_f32 {vr(t1,2)}, {re}, {c}")
            k(f"v_pk_mul_f32 {vr(t2,2)}, {im}, {c}")
            k(f"v_pk_fma_f32 {vr(t1,2)}, {im}, {s}, {vr(t1,2)} {NEG2 if conj else ''}")
            k(f"v_pk_fma_f32 {vr(t2,2)}, {re}, {s}, {vr(t2,2)} {'' if conj else NEG2}")
            k(f"v_cvt_pk_bf16_f32 v{op+p}, v{t1}, v{t1+1}")
            k(f"v_cvt_pk_bf16_f32 v{op+8+p}, v{t2}, v{t2+1}")
    def angles(dc, ds, v_start, v_step, n=16, scale=None):
        k(f"v_add_f32 v23, v{v_start}, v{v_step}")
        k(f"v_cos_f32 v{dc}, v{v_start}\nv_sin_f32 v{ds}, v{v_start}\nv_cos_f32 v{dc+1}, v23\nv_sin_f32 v{ds+1}, v23")
        k(f"v_add_f32 v23, v{v_step}, v{v_step}")
        k("v_cos_f32 v20, v23\nv_sin_f32 v21, v23")
        if scale is not None:
            k(f"v_pk_mul_f32 {vr(dc,2)}, {vr(dc,2)}, {scale} op_sel_hi:[1,0]\nv_pk_mul_f32 {vr(ds,2)}, {vr(ds,2)}, {scale} op_sel_hi:[1,0]")
        for p in range(1, n // 2):
            C0, S0, C1, S1 = vr(dc+2*p-2, 2), vr(ds+2*p-2, 2), vr(dc+2*p, 2), vr(ds+2*p, 2)
            k(f"v_pk_mul_f32 {C1}, {C0}, v[20:21] op_sel_hi:[1,0]")
            k(f"v_pk_mul_f32 {S1}, {S0}, v[20:21] op_sel_hi:[1,0]")
            k(f"v_pk_fma_f32 {C1}, {S0}, v[20:21], {C1} op_sel:[0,1,0] op_sel_hi:[1,1,1] {NEG2}")
            k(f"v_pk_fma_f32 {S1}, {C0}, v[20:21], {S1} op_sel:[0,1,0] op_sel_hi:[1,1,1]")
    def family(fam, c, s):
        for p in range(8):
            t = TMP + 4 * (p % 2)
            k(f"v_cvt_pk_bf16_f32 v{t}, v{c+2*p}, v{c+2*p+1}")
            k(f"v_cvt_pk_bf16_f32 v{t+1}, v{s+2*p}, v{s+2*p+1}")
            k(f"v_cvt_pk_bf16_f32 v{t+2}, -v{s+2*p}, -v{s+2*p+1}")
            for i in range(3): k(f"v_accvgpr_write_b32 a{fam+8*i+p}, v{t+i}")
    def rne_bf16(dst, src):
        k(f"v_cvt_pk_bf16_f32 v{dst}, v{src}, v{src}\nv_and_b32 v{dst}, 0xffff0000, v{dst}")
    def sd_from_var(v):
        k(f"v_max_f32 v{v}, 0, v{v}")
        rne_bf16(v, v)
        k(f"v_add_f32 v{v}, 0x3727c5ac, v{v}")
        rne_bf16(v, v)
        k(f"v_sqrt_f32 v{v}, v{v}")
        rne_bf16(v, v)
    def poll(loads, words, kind='v'):
        L = lab("pb")
        k("s_mov_b32 s46, 0")
        k.label(L)
        for x in loads: k(x)
        k("s_waitcnt vmcnt(0)")
        k(f"v_max_u32 v31, v{words[0]}, v{words[1]}")
        rest = words[2:]
        while len(rest) >= 2:
            k(f"v_max3_u32 v31, v31, v{rest[0]}, v{rest[1]}"); rest = rest[2:]
        if rest: k(f"v_max_u32 v31, v31, v{rest[0]}")
        k("v_cmp_eq_u32 vcc, -1, v31")
        k(f"s_add_u32 s46, s46, 1\ns_cmp_ge_u32 s46, {SPIN_MAX}\ns_cbranch_scc1 L_fail")
        k("s_mov_b64 exec, vcc")
        k(f"s_cbranch_execnz {L}")
        k("s_mov_b64 exec, -1")
    def ld4(dst, voff, soff, off=0, kind='v'):
        d = vr(dst, 4) if kind == 'v' else ar(dst, 4)
        return f"buffer_load_dwordx4 {d}, v{voff}, {sr(SRD_W,4)}, {soff} offen offset:{off} sc1"
    def blk_loads(dst, sbase):
        return [ld4(dst + 4*i, V_T16, f"s{sbase+i}") for i in range(4)]
    def set4(sb, expr_s):
        k(f"s_mov_b32 s{sb}, {expr_s}")
        for i in range(1, 4): k(f"s_add_u32 s{sb+i}, {expr_s}, {4096*i}")
    def pinv(dst, src, t):
        k(f"v_and_b32 v{dst}, 3, v{src}")
        k(f"v_bfe_u32 v{t}, v{src}, 4, 1\nv_lshl_or_b32 v{dst}, v{t}, 2, v{dst}")
        k(f"v_bfe_u32 v{t}, v{src}, 2, 2\nv_lshl_or_b32 v{dst}, v{t}, 3, v{dst}")
    def init_block(sreg, n=4):
        for i in range(n):
            k(f"s_add_u32 s47, {sreg}, {4096*i}")
            k(f"buffer_store_dwordx4 v[24:27], v{V_T16}, {sr(SRD_W,4)}, s47 offen sc1")

    def wprep_setup():
        k("s_lshr_b32 s41, s2, 2\ns_and_b32 s41, s41, 7")
        k("s_lshr_b32 s42, s41, 1\ns_lshl_b32 s42, s42, 2\ns_and_b32 s43, s41, 1\ns_lshl_b32 s43, s43, 4\ns_or_b32 s42, s42, s43")
        k("s_lshl_b32 s42, s42, 1\ns_lshr_b32 s43, s2, 1\ns_and_b32 s43, s43, 1\ns_add_u32 s42, s42, s43")
        k("s_lshr_b32 s43, s2, 5\ns_lshl_b32 s43, s43, 8\ns_add_u32 s56, s42, s43")
        k("s_and_b32 s42, s2, 1\ns_lshl_b32 s42, s42, 1\ns_lshr_b32 s43, s2, 1\ns_and_b32 s43, s43, 1\ns_add_u32 s42, s42, s43\ns_lshl_b32 s57, s42, 12")
        k("s_lshr_b32 s42, s2, 5\ns_and_b32 s43, s42, 3\ns_lshl_b32 s43, s43, 10\ns_add_u32 s57, s57, s43")
        k("s_lshr_b32 s42, s42, 2\ns_lshl_b32 s42, s42, 9\ns_add_u32 s57, s57, s42\ns_lshl_b32 s41, s41, 6\ns_add_u32 s57, s57, s41")
    def wprep_addr():
        k(f"s_lshl_b32 s41, s{S_V}, 6\ns_add_u32 s41, s41, s56\ns_mul_i32 s41, s41, 1026\ns_and_b32 s42, s2, 1\ns_lshl_b32 s42, s42, 9\ns_add_u32 s41, s41, s42\ns_and_b32 s41, s41, -4")
        k(f"v_and_b32 v28, 31, v{V_L}\nv_lshlrev_b32 v28, 4, v28\nv_mul_u32_u24 v29, 2052, v{V_H}\nv_add_u32 v28, v28, v29")
        k(f"v_and_b32 v29, 3, v{V_L}\nv_mul_u32_u24 v29, 2052, v29")
        k("s_add_u32 s42, s41, 4104")
    def wprep_load(srd_r, srd_i, dst, kind):
        R = (lambda b, n: vr(b, n)) if kind == 'v' else (lambda b, n: ar(b, n))
        for a, srd in enumerate((srd_r, srd_i)):
            k(f"buffer_load_dwordx4 {R(dst+8*a,4)}, v28, {sr(srd,4)}, s41 offen")
            k(f"buffer_load_dwordx4 {R(dst+8*a+4,4)}, v28, {sr(srd,4)}, s42 offen")
            k(f"buffer_load_dword {kind}{dst+16+a}, v29, {sr(srd,4)}, s41 offen offset:512")
    def wprep_load_special():
        L = lab("wsl")
        k(f"v_bfe_u32 v30, v{V_L}, 2, 2\nv_and_b32 v31, 3, v{V_L}\nv_lshlrev_b32 v31, 6, v31\nv_lshl_add_u32 v30, v30, 1, v31\nv_add_u32 v30, s56, v30")
        k("v_sub_u32 v31, 0x800, v30\nv_and_b32 v31, 0x7ff, v31\nv_mul_u32_u24 v30, 1026, v30\nv_mul_u32_u24 v31, 1026, v31")
        k(f"s_and_b32 s43, s2, 1\ns_or_b32 s43, s43, s{S_V}\ns_cmp_lg_u32 s43, 0\ns_cbranch_scc1 {L}")
        for kind, dst, srds in (('v', WU + 18, (SRD_AR, SRD_AI)), ('a', A_LB + 18, (SRD_BR, SRD_BI))):
            n = 0
            for srd in srds:
                for col in (0, 1024):
                    for va in (30, 31):
                        k(f"buffer_load_ushort {kind}{dst+n}, v{va}, {sr(srd,4)}, 0 offen offset:{col}"); n += 1
        k.label(L)
    def wprep_lds_write(src, kind, base):
        R = (lambda b, n: vr(b, n)) if kind == 'v' else (lambda b, n: ar(b, n))
        k(f"s_mul_i32 s41, s{S_V}, {4*WSEG}\ns_add_u32 s41, s41, {base}")
        k(f"v_and_b32 v30, 31, v{V_L}\nv_lshlrev_b32 v30, 4, v30\nv_mul_u32_u24 v31, {WSEG}, v{V_H}\nv_add3_u32 v30, v30, v31, s41")
        k(f"v_and_b32 v31, 3, v{V_L}\nv_mul_u32_u24 v31, {WSEG}, v31\nv_add_u32 v31, s41, v31")
        for a in range(2):
            k(f"ds_write_b128 v30, {R(src+8*a,4)} offset:{a*16*WSEG}")
            k(f"ds_write_b128 v30, {R(src+8*a+4,4)} offset:{a*16*WSEG+2*WSEG}")
            k(f"ds_write_b32 v31, {kind}{src+16+a} offset:{a*16*WSEG+512}")
    def wprep_gather_store(wsbase, dst, hi, sp, base, sp_a=None):
        k(f"v_lshrrev_b32 v28, 2, v{V_TID}\nv_and_b32 v29, 3, v{V_TID}\nv_mul_u32_u24 v29, {WSEG}, v29")
        k(f"s_and_b32 s41, s2, 2\ns_add_u32 s41, s41, {base}\nv_add_u32 v29, s41, v29")
        k("s_and_b32 s42, s2, 1\ns_sub_u32 s42, 0, s42")
        for kk in range(4):
            k(f"v_add_u32 v30, {kk*64}, v28\nv_xor_b32 v30, s42, v30\nv_subrev_u32 v30, s42, v30\nv_and_b32 v30, 0xff, v30")
            k("v_lshl_add_u32 v30, v30, 1, v29")
            for i in range(4):
                k(f"ds_read_u16 v{dst+4*kk+i}, v30 offset:{i*4*WSEG}")
                k(f"ds_read_u16 v{hi+4*kk+i}, v30 offset:{(16+i*4)*WSEG}")
        k(f"s_add_u32 s41, s57, {wsbase}")
        k(f"s_and_b32 s42, s2, 1\ns_or_b32 s42, s42, s{S_V}\ns_cmp_eq_u32 s42, 0\ns_cselect_b32 s44, -16, -1\ns_mov_b32 s45, -1")
        for kk in range(4):
            k(f"s_waitcnt lgkmcnt({15 if kk < 2 else 8*(3-kk)})")
            for i in range(4): k(f"v_lshl_or_b32 v{dst+4*kk+i}, v{hi+4*kk+i}, 16, v{dst+4*kk+i}")
            k(f"v_min_u32 v{dst+4*kk+3}, -2, v{dst+4*kk+3}")
            k(f"s_add_u32 s47, s41, {kk*64*16384}")
            if kk == 0: k("s_mov_b64 exec, s[44:45]")
            k(f"buffer_store_dwordx4 {vr(dst+4*kk,4)}, v{V_SC}, {sr(SRD_W,4)}, s47 offen sc1")
            if kk == 0: k("s_mov_b64 exec, -1")
        L = lab("wsp")
        k(f"s_cmp_lg_u32 s42, 0\ns_cbranch_scc1 {L}")
        if sp_a is not None:
            for n in range(8): k(f"v_accvgpr_read_b32 v{sp+n}, a{sp_a+n}")
        for n in range(8): k(f"v_lshlrev_b32 v{sp+n}, 16, v{sp+n}")
        k(f"v_add_f32 v{sp}, v{sp}, v{sp+1}\nv_add_f32 v{sp+2}, v{sp+2}, v{sp+3}\nv_sub_f32 v{sp+4}, v{sp+4}, v{sp+5}\nv_sub_f32 v{sp+6}, v{sp+6}, v{sp+7}")
        k(f"v_add_f32 v{sp+1}, v{sp}, v{sp+2}\nv_sub_f32 v{sp+3}, v{sp}, v{sp+2}\nv_add_f32 v{sp+5}, v{sp+4}, v{sp+6}\nv_sub_f32 v{sp+7}, v{sp+4}, v{sp+6}")
        for n in (1, 3, 5, 7): k(f"v_mul_f32 v{sp+n}, 0x3e800000, v{sp+n}")
        k(f"v_cvt_pk_bf16_f32 v{sp}, v{sp+1}, v{sp+5}\nv_cvt_pk_bf16_f32 v{sp+2}, v{sp+3}, v{sp+7}")
        k(f"v_min_u32 v{sp}, -2, v{sp}\nv_min_u32 v{sp+2}, -2, v{sp+2}")
        k(f"v_lshlrev_b32 v30, 2, v{V_L}")
        k(f"s_add_u32 s47, s41, {256*16384}")
        k("s_mov_b64 exec, 0xffff")
        k(f"buffer_store_dword v{sp}, v30, {sr(SRD_W,4)}, s41 offen sc1")
        k(f"buffer_store_dword v{sp+2}, v30, {sr(SRD_W,4)}, s47 offen sc1")
        k("s_mov_b64 exec, -1")
        k.label(L)
    def w_unpack_v(src, dre, dim):
        for r in range(16):
            k(f"v_lshlrev_b32 v{dre+r}, 16, v{src+r}\nv_and_b32 v{dim+r}, 0xffff0000, v{src+r}")
    def w_unpack(a_w, dre, dim):
        for r in range(16): k(f"v_accvgpr_read_b32 v{dim+r}, a{a_w+r}")
        w_unpack_v(dim, dre, dim)

    k(f"s_cmp_ge_u32 s2, 256\ns_cbranch_scc1 L_end")
    k("s_load_dwordx16 s[64:79], s[0:1], 0\ns_load_dwordx2 s[80:81], s[0:1], 64")
    k("s_getpc_b64 s[82:83]")
    k(f"v_lshlrev_b32 v30, 7, v0\nv_min_u32 v30, {CODE_BYTES-4}, v30")
    k("global_load_dword a255, v30, s[82:83]")
    stamp("start")
    k(f"v_and_b32 v{V_L}, 63, v0\nv_lshrrev_b32 v30, 6, v0")
    k(f"v_lshlrev_b32 v{V_T16}, 4, v0")
    k(f"v_readfirstlane_b32 s{S_V}, v30")
    k(f"v_lshrrev_b32 v{V_H}, 5, v{V_L}\nv_lshlrev_b32 v{V_L16}, 4, v{V_L}")
    k(f"v_and_b32 v{V_PI}, 3, v0\nv_bfe_u32 v30, v0, 3, 2\nv_lshl_or_b32 v{V_PI}, v30, 2, v{V_PI}\nv_bfe_u32 v30, v0, 2, 1\nv_lshl_or_b32 v{V_PI}, v30, 4, v{V_PI}")
    k(f"v_lshlrev_b32 v{V_XO}, 6, v{V_PI}\nv_lshl_add_u32 v{V_XO}, v{V_H}, 5, v{V_XO}")
    k(f"s_lshr_b32 s41, s2, 5\ns_lshl_b32 s41, s41, 2\ns_add_u32 s41, s41, s{S_V}\ns_lshl_b32 s41, s41, 5\ns_and_b32 s42, s2, 31\ns_add_u32 s41, s41, s42")
    k("s_lshl_b32 s50, s41, 11\ns_add_u32 s51, s50, 0x200000")
    k("s_waitcnt lgkmcnt(0)")
    def srd(d, p, size):
        k(f"s_mov_b32 s{d}, s{p}\ns_mov_b32 s{d+1}, s{p+1}\ns_mov_b32 s{d+2}, {size}\ns_mov_b32 s{d+3}, 0x00020000")
    srd(SRD_X, 64, 4194304)
    for e in range(2):
        for t in range(2):
            k(f"buffer_load_dwordx4 {ar(A_XA+8*e+4*t,4)}, v{V_XO}, {sr(SRD_X,4)}, s{50+e} offen offset:{16*t}")
    srd(SRD_W, 80, WS_SIZE)
    for i in range(4): k(f"v_mov_b32 v{24+i}, -1")
    k(f"s_lshl_b32 s58, s2, 14")
    k(f"s_add_u32 s42, s58, {WS_E0}");  init_block("s42")
    k(f"s_add_u32 s42, s58, {WS_WA}");  init_block("s42")
    k(f"s_mul_i32 s43, s2, 864\ns_add_u32 s43, s43, {WS_SM}")
    k(f"v_cmp_gt_u32 vcc, 54, v0\nv_mov_b32 v29, 0x7ffffff0\nv_cndmask_b32 v30, v29, v{V_T16}, vcc")
    k(f"buffer_store_dwordx4 v[24:27], v30, {sr(SRD_W,4)}, s43 offen sc1")
    k(f"s_lshl_b32 s43, s2, 6\ns_add_u32 s43, s43, {WS_WA + 256*16384}")
    k(f"v_cmp_gt_u32 vcc, 4, v0\nv_cndmask_b32 v30, v29, v{V_T16}, vcc")
    k(f"buffer_store_dwordx4 v[24:27], v30, {sr(SRD_W,4)}, s43 offen sc1")
    k(f"s_and_b32 s59, s2, 127\ns_lshl_b32 s59, s59, 14\ns_lshr_b32 s42, s2, 7\ns_lshl_b32 s42, s42, 13\ns_add_u32 s60, s59, s42")
    k(f"s_add_u32 s42, s60, {WS_H1}"); init_block("s42", 2)
    srd(SRD_O, 76, 4194304); srd(SRD_D, 78, 256)
    WB = 2048 * 513 * 2
    srd(SRD_AR, 66, WB); srd(SRD_AI, 68, WB); srd(SRD_BR, 72, WB); srd(SRD_BI, 74, WB)
    k(f"s_and_b32 s{S_E}, s{S_V}, 1\ns_lshr_b32 s{S_C}, s{S_V}, 1")
    k(f"s_or_b32 s41, s2, s{S_C}\ns_cmp_eq_u32 s41, 0\ns_cselect_b32 s{S_SP}, 1, 0")
    wprep_setup()
    wprep_addr()
    wprep_load(SRD_AR, SRD_AI, WU, 'v')
    wprep_load_special()
    wprep_load(SRD_BR, SRD_BI, A_LB, 'a')
    stamp("issued")
    k(f"v_cvt_f32_u32 v{V_PIF}, v{V_PI}\nv_cvt_f32_u32 v{V_H16}, v{V_H}\nv_mul_f32 v{V_H16}, 0x41800000, v{V_H16}")
    k(f"v_mul_f32 v28, 0x3d000000, v{V_PIF}\nv_mul_f32 v27, v28, v{V_H16}")
    angles(DA, DA + 16, 27, 28)
    family(A_F0, DA, DA + 16)
    k(f"v_lshlrev_b32 v28, 4, v{V_H}\nv_sub_u32 v28, v{V_PI}, v28")
    k("v_and_b32 v27, 1, v28\nv_lshlrev_b32 v27, 4, v27\nv_mov_b32 v26, 0x3f80\nv_lshlrev_b32 v26, v27, v26\nv_ashrrev_i32 v28, 1, v28")
    for p in range(8):
        k(f"v_cmp_eq_u32 vcc, {p}, v28\nv_cndmask_b32 v{TMP+p}, 0, v26, vcc")
    for p in range(8): k(f"v_accvgpr_write_b32 a{A_ID+p}, v{TMP+p}")
    k(f"v_mul_f32 v28, 0x3a800000, v{V_PIF}\nv_mul_f32 v27, v28, v{V_H16}")
    angles(WM, WM + 16, 27, 28)
    k(f"v_cvt_f32_u32 v26, s{S_E}\nv_fma_f32 v25, 2.0, v{V_PIF}, v26")
    k(f"v_mul_f32 v28, 0x3c800000, v25\nv_mul_f32 v27, v28, v{V_H16}")
    angles(DA, DA + 16, 27, 28)
    family(A_SA, DA, DA + 16)
    k(f"v_mul_f32 v28, 0x3a000000, v25\nv_mul_f32 v27, v28, v{V_H16}")
    angles(TF, TF + 16, 27, 28)
    k(f"v_fma_f32 v25, 2.0, v{V_H16}, v26\nv_mul_f32 v25, v25, v{V_PIF}")
    k(f"v_mul_f32 v28, 0x3d000000, v{V_PIF}\nv_mul_f32 v27, 0x3c800000, v25")
    angles(DA, DA + 16, 27, 28)
    family(A_IB, DA, DA + 16)
    k(f"v_mul_f32 v28, 0x3a800000, v{V_PIF}\nv_mul_f32 v27, 0x3a000000, v25")
    k("s_mov_b32 s62, 0x3a000000")
    angles(TI, TI + 16, 27, 28, scale="s[62:63]")
    RA = P0
    k(f"v_lshrrev_b32 v28, 2, v{V_TID}")
    k(f"v_and_b32 v27, 2, v{V_TID}\nv_cmp_ne_u32 s[48:49], 0, v27")
    k(f"v_and_b32 v27, 1, v{V_TID}\nv_cmp_ne_u32 s[52:53], 0, v27")
    k(f"v_mul_u32_u24 v27, {RO_COMP}, v27\nv_add_u32 v27, {L_RO}, v27")
    def qaddr(dst, q, base, t):
        k(f"v_lshrrev_b32 v{t}, 5, v{q}\nv_mul_u32_u24 v{dst}, 144, v{t}\nv_lshrrev_b32 v{t}, 9, v{q}\nv_lshl_add_u32 v{dst}, v{t}, 6, v{dst}")
        k(f"v_and_b32 v{t}, 31, v{q}\nv_lshl_add_u32 v{dst}, v{t}, 2, v{dst}\nv_add_u32 v{dst}, v{dst}, v{base}")
    for kk in range(4):
        k(f"v_add_u32 v26, {kk*64}, v28\nv_sub_u32 v25, 0x200, v26")
        if kk == 0:
            k("v_cmp_eq_u32 vcc, 0, v26\nv_mov_b32 v24, 0x100\nv_cndmask_b32 v25, v25, v24, vcc")
        k("v_cndmask_b32 v26, v26, v25, s[48:49]")
        k("v_sub_u32 v25, 0x400, v26\nv_and_b32 v25, 0x3ff, v25")
        k("v_cndmask_b32 v24, v25, v26, s[52:53]\nv_cndmask_b32 v25, v26, v25, s[52:53]")
        qaddr(RA + kk, 24, 27, 23)
        qaddr(RA + 4 + kk, 25, 27, 23)
    A512 = (16*36 + 16) * 4
    k(f"v_cmp_gt_u32 vcc, 2, v{V_TID}\nv_sub_u32 v24, {2*L_RO + RO_COMP + A512}, v27\nv_cndmask_b32 v{RA+4}, v{RA+4}, v24, vcc")
    k("s_mov_b64 s[88:89], vcc")
    k(f"v_and_b32 v26, 3, v{V_TID}\nv_lshlrev_b32 v26, 4, v26\nv_lshl_add_u32 v{V_SC}, v28, 14, v26")
    k(f"s_lshl_b32 s41, s{S_V}, 12\nv_add_u32 v{V_OWN}, s41, v{V_L16}")
    k(f"s_lshl_b32 s41, s{S_C}, 10\ns_lshl_b32 s42, s{S_E}, 3\ns_add_u32 s41, s41, s42\nv_add_u32 v{V_QT}, s41, v{V_L16}")
    k(f"v_mul_u32_u24 v20, 144, v{V_PI}\nv_lshrrev_b32 v31, 4, v{V_PI}\nv_add_u32 v31, v31, v{V_H}\nv_lshl_add_u32 v20, v31, 6, v20")
    k(f"s_mul_i32 s41, s{S_V}, {RO_PLANE}\ns_add_u32 s41, s41, {L_RO}\nv_add_u32 v20, s41, v20")
    stamp("tabs")
    k("s_waitcnt vmcnt(6)")
    stamp("arr")
    XS = BA
    for e in range(2): mfma(XS + 16*e, ar(A_XA+8*e, 4), ar(A_ID, 4), "0")
    for e in range(2): mfma(XS + 16*e, ar(A_XA+8*e+4, 4), ar(A_ID+4, 4), vr(XS+16*e, 16))
    wprep_lds_write(WU, 'v', L_WS)
    k("s_barrier")
    L = lab("sf")
    k(f"s_cmp_lg_u32 s{S_V}, 0\ns_cbranch_scc1 {L}")
    k("v_mov_b32 v30, 1\nv_mov_b32 v31, s2\ns_mov_b64 exec, 1")
    k(f"buffer_store_byte v30, v31, {sr(SRD_D,4)}, 0 offen sc1")
    k("s_mov_b64 exec, -1")
    k.label(L)
    k(f"v_readlane_b32 s52, v{XS}, 0\nv_readlane_b32 s54, v{XS+16}, 0")
    for p in range(8):
        for e in range(2):
            k(f"v_pk_add_f32 {vr(XS+16*e+2*p,2)}, {vr(XS+16*e+2*p,2)}, s[{52+2*e}:{53+2*e}] op_sel_hi:[1,0] neg_lo:[0,1] neg_hi:[0,1]")
    for e in range(2):
        x = XS + 16*e
        k(f"v_pk_add_f32 {vr(TMP+2*e,2)}, {vr(x,2)}, {vr(x+2,2)}")
        k(f"v_pk_mul_f32 {vr(TMP+4+2*e,2)}, {vr(x,2)}, {vr(x,2)}")
    for p in range(1, 8):
        for e in range(2):
            x = XS + 16*e + 2*p
            if p >= 2: k(f"v_pk_add_f32 {vr(TMP+2*e,2)}, {vr(TMP+2*e,2)}, {vr(x,2)}")
            k(f"v_pk_fma_f32 {vr(TMP+4+2*e,2)}, {vr(x,2)}, {vr(x,2)}, {vr(TMP+4+2*e,2)}")
    for i in range(4): k(f"v_add_f32 v{TMP+2*i}, v{TMP+2*i}, v{TMP+2*i+1}")
    S0, S1, Q0, Q1 = TMP, TMP+2, TMP+4, TMP+6
    k(f"v_permlane32_swap_b32 v{S0}, v{S1}\nv_permlane32_swap_b32 v{Q0}, v{Q1}")
    k(f"v_add_f32 v{S0}, v{S0}, v{S1}\nv_add_f32 v{Q0}, v{Q0}, v{Q1}")
    k(f"v_mov_b32 v{S1}, v{S0}\nv_mov_b32 v{Q1}, v{Q0}")
    k(f"v_permlane16_swap_b32 v{S0}, v{S1}\nv_permlane16_swap_b32 v{Q0}, v{Q1}")
    k(f"v_add_f32 v{S0}, v{S0}, v{S1}\nv_add_f32 v{Q0}, v{Q0}, v{Q1}")
    PV, MN, MB, VV = TMP+8, TMP+9, TMP+10, TMP+11
    fill = [f"v_mov_b32 v{PV}, s52", f"v_mov_b32 v{MN}, s54", f"v_cmp_eq_u32 vcc, 0, v{V_H}", f"s_lshl_b32 s41, s{S_V}, 2"]
    for n, sh in enumerate((8, 4, 2, 1)):
        k(fill[n])
        k(f"v_add_f32_dpp v{S0}, v{S0}, v{S0} row_ror:{sh} row_mask:0xf bank_mask:0xf")
        k(f"v_add_f32_dpp v{Q0}, v{Q0}, v{Q0} row_ror:{sh} row_mask:0xf bank_mask:0xf")
    k(f"v_cndmask_b32 v{PV}, v{MN}, v{PV}, vcc")
    k(f"v_mul_f32 v{S0}, 0x3a800000, v{S0}\nv_mul_f32 v{Q0}, 0x3a800000, v{Q0}")
    k(f"v_fma_f32 v{Q0}, -v{S0}, v{S0}, v{Q0}")
    k(f"v_add_f32 v{MN}, v{PV}, v{S0}\nv_mov_b32 v{VV}, v{Q0}")
    sd_from_var(Q0)
    rne_bf16(MB, MN)
    k(f"v_rcp_f32 v{S1}, v{Q0}")
    k(f"v_sub_f32 v{MB}, v{PV}, v{MB}")
    k(f"v_mul_f32 v{S1}, 0.5, v{S1}")
    k(f"v_mul_f32 v{MB}, v{MB}, v{S1}")
    k(f"v_mul_f32 v{MN}, 0x44800000, v{MN}")
    k(f"v_readlane_b32 s52, v{S1}, 0\nv_readlane_b32 s53, v{MB}, 0\nv_readlane_b32 s54, v{S1}, 32\nv_readlane_b32 s55, v{MB}, 32")
    k(f"s_add_u32 s41, s41, {L_SM}\nv_lshlrev_b32 v30, 4, v{V_H}\nv_add_u32 v30, s41, v30")
    k(f"ds_write2_b32 v30, v{Q0}, v{MN} offset0:0 offset1:8\nds_write_b32 v30, v{VV} offset:64")
    for p in range(8):
        x0, x1 = XS + 2*p, XS + 16 + 2*p
        t = TMP + 4 * (p % 2)
        for e, x in enumerate((x0, x1)):
            k(f"v_pk_fma_f32 {vr(x,2)}, {vr(x,2)}, s[{52+2*e}:{53+2*e}], s[{52+2*e}:{53+2*e}] op_sel:[0,0,1] op_sel_hi:[1,0,1]")
        k(f"v_pk_add_f32 {vr(t,2)}, {vr(x0,2)}, {vr(x1,2)}\nv_pk_add_f32 {vr(t+2,2)}, {vr(x0,2)}, {vr(x1,2)} neg_lo:[0,1] neg_hi:[0,1]")
        k(f"v_cvt_pk_bf16_f32 v{OP+p}, v{t}, v{t+1}\nv_cvt_pk_bf16_f32 v{OP+8+p}, v{t+2}, v{t+3}")
    stamp("ln")
    dft(DA, OP, A_F0, True, False, False)
    cmul_pack(DA, WM, OP, False)
    k(f"v_lshlrev_b32 v29, 2, v{V_L}")
    dft(XS, OP, A_F0, True, False, False)
    L, L2 = lab("pf"), lab("pfe")
    k(f"s_cmp_lg_u32 s{S_V}, 0\ns_cbranch_scc1 {L2}")
    k("s_mov_b32 s46, 0\ns_mov_b32 s47, 0x01010101")
    k.label(L)
    k(f"buffer_load_dword v31, v29, {sr(SRD_D,4)}, 0 offen sc1")
    k("s_waitcnt vmcnt(0)")
    k("v_cmp_ne_u32 vcc, s47, v31")
    k(f"s_add_u32 s46, s46, 1\ns_cmp_ge_u32 s46, {SPIN_MAX}\ns_cbranch_scc1 L_fail")
    k(f"s_cbranch_vccz {L2}\ns_sleep 4\ns_branch {L}")
    k.label(L2)
    for comp in range(2):
        for gq in range(4):
            k(f"ds_write_b128 v20, {vr(XS+16*comp+4*gq,4)} offset:{comp*RO_COMP+16*gq}")
    k("s_waitcnt vmcnt(0)")
    wprep_lds_write(A_LB, 'a', L_WS2)
    k(f"v_add_u32 v30, {L_SM}, v{V_T16}")
    k(f"s_lshl_b32 s41, s2, 6\ns_add_u32 s41, s41, {WS_E0}")
    k("s_waitcnt lgkmcnt(0)")
    stamp("f2")
    k("s_barrier")
    U = RO_PLANE // 256
    for kk in range(4):
        b = DA + 8*kk
        k(f"ds_read2st64_b32 {vr(b,2)}, v{RA+kk} offset0:0 offset1:{U}")
        k(f"ds_read2st64_b32 {vr(b+2,2)}, v{RA+kk} offset0:{2*U} offset1:{3*U}")
        k(f"ds_read2st64_b32 {vr(b+4,2)}, v{RA+4+kk} offset0:0 offset1:{U}")
        k(f"ds_read2st64_b32 {vr(b+6,2)}, v{RA+4+kk} offset0:{2*U} offset1:{3*U}")
    for kk in range(4):
        b = DA + 8*kk; o = OP + 4*kk
        k(f"s_waitcnt lgkmcnt({4*(3-kk)})")
        for hh in range(2):
            k(f"v_pk_add_f32 {vr(TMP+2*hh,2)}, {vr(b+2*hh,2)}, {vr(b+4+2*hh,2)}")
            k(f"v_pk_add_f32 {vr(TMP+4+2*hh,2)}, {vr(b+2*hh,2)}, {vr(b+4+2*hh,2)} neg_lo:[0,1] neg_hi:[0,1]")
        if kk == 0:
            k("s_mov_b64 exec, s[88:89]")
            for hh in range(2):
                k(f"v_pk_add_f32 {vr(TMP+2*hh,2)}, {vr(b+2*hh,2)}, {vr(b+2*hh,2)}")
                k(f"v_pk_add_f32 {vr(TMP+4+2*hh,2)}, {vr(b+4+2*hh,2)}, {vr(b+4+2*hh,2)}")
            k("s_mov_b64 exec, -1")
        for i in range(4): k(f"v_cvt_pk_bf16_f32 v{o+i}, v{TMP+2*i}, v{TMP+2*i+1}")
        k(f"v_min_u32 v{o+3}, -2, v{o+3}")
        k(f"s_add_u32 s47, s41, {kk*64*16384}")
        k(f"buffer_store_dwordx4 {vr(o,4)}, v{V_SC}, {sr(SRD_W,4)}, s47 offen sc1")
    L = lab("st")
    k(f"s_cmp_lg_u32 s{S_V}, 0\ns_cbranch_scc1 {L}")
    k(f"ds_read_b128 {vr(TMP+8,4)}, v30")
    k("s_and_b32 s42, s2, 3\ns_lshr_b32 s43, s2, 4\ns_and_b32 s43, s43, 1\ns_lshl_b32 s43, s43, 2\ns_or_b32 s42, s42, s43")
    k("s_lshr_b32 s43, s2, 2\ns_and_b32 s43, s43, 3\ns_lshl_b32 s43, s43, 3\ns_or_b32 s42, s42, s43")
    k("s_lshr_b32 s43, s2, 7\ns_lshl_b32 s43, s43, 5\ns_add_u32 s42, s42, s43\ns_lshl_b32 s42, s42, 4")
    k(f"s_lshr_b32 s43, s2, 5\ns_and_b32 s43, s43, 3\ns_lshl_b32 s43, s43, 10\ns_add_u32 s42, s42, s43\ns_add_u32 s42, s42, {WS_S0}")
    k(f"v_lshlrev_b32 v30, 12, v{V_TID}")
    k("s_waitcnt lgkmcnt(0)")
    for i in range(4): k(f"v_min_u32 v{TMP+8+i}, -2, v{TMP+8+i}")
    k("s_mov_b64 exec, 63")
    k(f"buffer_store_dwordx4 {vr(TMP+8,4)}, v30, {sr(SRD_W,4)}, s42 offen sc1")
    k("s_mov_b64 exec, -1")
    k.label(L)
    stamp("e0_st")
    wprep_gather_store(WS_WA, BA, BA + 16, WU + 18, L_WS)
    stamp("wa_st")
    wprep_gather_store(WS_WB, WM, WM + 16, WU, L_WS2, sp_a=A_LB + 18)
    if checkpoint("r0_done"): return k
    stamp("wb_st")
    k(f"v_bfe_u32 v28, v{V_TID}, 2, 5")
    pinv(27, 28, 26)
    k(f"v_lshlrev_b32 v27, 4, v27\nv_lshrrev_b32 v26, 7, v{V_TID}\nv_lshl_add_u32 v27, v26, 3, v27")
    k(f"v_and_b32 v26, 3, v{V_TID}\nv_lshl_add_u32 v20, v26, 12, v27\nv_add_u32 v20, {L_OPS}, v20")
    k(f"v_xor_b32 v26, 1, v26\nv_lshl_add_u32 v21, v26, 12, v27\nv_add_u32 v21, {L_OPS+2048}, v21")
    k(f"s_add_u32 s42, s58, {WS_E0}")
    set4(90, "s42")
    k(f"s_lshl_b32 s61, s{S_V}, 10")
    k(f"s_add_u32 s42, s61, {WS_S0}\ns_add_u32 s43, s42, 4096")
    k(f"s_lshr_b32 s44, s59, 8\ns_add_u32 s44, s44, {WS_V0}\nv_and_b32 v29, 15, v{V_L}\nv_lshlrev_b32 v29, 2, v29")
    poll(blk_loads(DA, 90) + [ld4(RS, V_L16, "s42"), ld4(RS+4, V_L16, "s43"), f"buffer_load_dword v23, v29, {sr(SRD_W,4)}, s44 offen sc1"],
         [DA+3, DA+7, DA+11, DA+15, RS+3, RS+7, 23])
    stamp("e0_ok")
    for kk in range(4):
        off = (kk & 1) * 1024 + (kk >> 1) * 512
        k(f"ds_write_b64 v20, {vr(DA+4*kk,2)} offset:{off}")
        k(f"ds_write_b64 v21, {vr(DA+4*kk+2,2)} offset:{off}")
    k(f"s_lshl_b32 s42, s{S_V}, 12\ns_add_u32 s63, s58, s42\ns_add_u32 s94, s63, {WS_WA}")
    k(f"s_mov_b32 s{S_LAY}, 0")
    k("s_waitcnt lgkmcnt(0)\ns_barrier")
    Q = WU
    for c in range(2):
        for w in range(2):
            for comp in range(2):
                k(f"ds_read_b64 {vr(Q+8*c+4*w+2*comp,2)}, v{V_QT} offset:{L_OPS+c*8192+w*4096+comp*2048}")
    for i in range(4):
        k(f"ds_read_b128 {vr(OP+4*i,4)}, v{V_OWN} offset:{L_OPS+1024*i}")
    for hh in range(4): k(f"v_pk_mul_f32 {vr(RS+2*hh,2)}, {vr(RS+2*hh,2)}, 0.5 op_sel_hi:[1,0]")
    k("s_waitcnt lgkmcnt(4)")
    for c in range(2):
        for comp in range(2):
            for hh in range(2):
                a, b = Q + 8*c + 2*comp + hh, Q + 8*c + 4 + 2*comp + hh
                k(f"v_lshlrev_b32 v{TMP}, 16, v{a}\nv_and_b32 v{TMP+1}, 0xffff0000, v{a}\nv_lshlrev_b32 v{TMP+2}, 16, v{b}\nv_and_b32 v{TMP+3}, 0xffff0000, v{b}")
                x1, x2 = BA + c*16 + comp*4 + 2*hh, BA + c*16 + 8 + comp*4 + 2*hh
                k(f"v_pk_add_f32 {vr(x1,2)}, {vr(TMP,2)}, {vr(TMP+2,2)}\nv_pk_add_f32 {vr(x2,2)}, {vr(TMP,2)}, {vr(TMP+2,2)} neg_lo:[0,1] neg_hi:[0,1]")
                k(f"v_pk_mul_f32 {vr(x1,2)}, {vr(x1,2)}, {vr(RS+2*hh,2)}\nv_pk_mul_f32 {vr(x2,2)}, {vr(x2,2)}, {vr(RS+4+2*hh,2)}")
    def psum(X, dst, init):
        Ls, Le = lab("ps"), lab("pe")
        for e in range(2):
            for hh in range(2):
                d = vr(dst + 4*e + 2*hh, 2)
                xr, xi = vr(X + 16 + 8*e + 2*hh, 2), vr(X + 16 + 8*e + 4 + 2*hh, 2)
                if init is None: k(f"v_pk_mul_f32 {d}, {xr}, {xr}")
                else: k(f"v_pk_fma_f32 {d}, {xr}, {xr}, {vr(init+4*e+2*hh,2)} neg_lo:[0,0,1] neg_hi:[0,0,1]")
                k(f"v_pk_fma_f32 {d}, {xi}, {xi}, {d}")
        k(f"s_cmp_eq_u32 s2, 0\ns_cbranch_scc1 {Ls}")
        for e in range(2):
            for hh in range(2):
                d = vr(dst + 4*e + 2*hh, 2)
                xr, xi = vr(X + 8*e + 2*hh, 2), vr(X + 8*e + 4 + 2*hh, 2)
                k(f"v_pk_fma_f32 {d}, {xr}, {xr}, {d}\nv_pk_fma_f32 {d}, {xi}, {xi}, {d}")
        k.label(Le)
        return Ls, Le, X, dst
    deferred = []
    deferred.append(psum(BA, P0, None))
    L = lab("m0")
    k(f"s_cmp_lg_u32 s2, 0\ns_cbranch_scc1 {L}")
    k(f"s_add_u32 s44, s61, {WS_M0}\ns_add_u32 s45, s44, 4096")
    poll([ld4(BA, V_L16, "s44"), ld4(BA+8, V_L16, "s45")], [BA+3, BA+11])
    k.label(L)
    for r in range(32): k(f"v_accvgpr_write_b32 a{A_XH+r}, v{BA+r}")
    if checkpoint("c_init", list(range(BA, BA+32)) + list(range(OP, OP+16))):
        flush_deferred(k, deferred); return k
    stamp("cinit")
    k("s_waitcnt lgkmcnt(0)")
    k("s_branch L_stage1")
    k.label("L_layer")
    k("s_barrier")
    for i in range(4):
        k(f"ds_read_b128 {vr(OP+4*i,4)}, v{V_OWN} offset:{L_OPS+1024*(0,2,1,3)[i]}".replace(vr(OP+4*i,4), vr(OP+4*(0,2,1,3)[i],4)))
    k("s_waitcnt lgkmcnt(0)")
    k.label("L_stage1")
    dft(DA, OP, A_SA, True, False, False)
    cmul_pack(DA, TF, OP, False)
    dft(DA, OP, A_F0, False, False, False)
    L = lab("wa")
    k(f"s_cmp_lg_u32 s{S_LAY}, 0\ns_cbranch_scc1 {L}")
    poll([ld4(WU+16+4*i, V_L16, "s94", 1024*i) for i in range(4)], [WU+16+4*i+3 for i in range(4)])
    for r in range(16): k(f"v_accvgpr_write_b32 a{A_WA+r}, v{WU+16+r}")
    w_unpack_v(WU+16, WU, WU+16)
    k(f"s_cmp_eq_u32 s{S_SP}, 0\ns_cbranch_scc1 {L}")
    k(f"s_add_u32 s42, s94, {256*16384}")
    poll([ld4(BA+16+4*i, V_L16, "s42", 1024*i) for i in range(4)], [BA+16+j for j in range(16)])
    for r in range(16): k(f"v_accvgpr_write_b32 a{A_WMA+r}, v{BA+16+r}")
    w_unpack_v(BA+16, WM, WM+16)
    k.label(L)
    stamp("st2", True)
    Ls, Le = lab("psp"), lab("pse")
    k(f"s_cmp_lg_u32 s{S_SP}, 0\ns_cbranch_scc1 {Ls}")
    cmul_pack(DA, WU, OP, True)
    k.label(Le)
    sp_pw = (Ls, Le)
    stamp("pw", True)
    dft(DA, OP, A_F0, True, True, False)
    Li = lab("li")
    k(f"s_cmp_ge_u32 s{S_LAY}, 2\ns_cbranch_scc1 {Li}")
    for i in range(4): k(f"v_mov_b32 v{24+i}, -1")
    k(f"s_lshl_b32 s41, s{S_LAY}, 21\ns_add_u32 s41, s41, s60\ns_add_u32 s42, s41, {WS_H1 + 0x200000}")
    init_block("s42", 2)
    k(f"s_lshl_b32 s41, s{S_LAY}, 13\ns_add_u32 s41, s41, s58\ns_add_u32 s42, s41, {WS_E1}")
    init_block("s42", 2)
    k.label(Li)
    cmul_pack(DA, TI, OP, True)
    L0, L1 = lab("i2a"), lab("i2b")
    def xh_fill(n):
        for r in range(4*n, 4*n+4): k(f"v_accvgpr_read_b32 v{DA+r}, a{A_XH+r}")
    k(f"s_cmp_lg_u32 s{S_LAY}, 0\ns_cbranch_scc1 {L0}")
    for r in range(32): k(f"v_mov_b32 v{BA+r}, 0")
    k.label(L0)
    dft(BA, OP, A_IB, False, True, True, filler=xh_fill)
    k(f"s_lshl_b32 s41, s{S_V}, 13\nv_add_u32 v30, s41, v{V_L16}\nv_add_u32 v29, s61, v{V_L16}")
    for comp in range(2):
        for gq in range(4):
            k(f"ds_write_b128 v30, {vr(BA+16*comp+4*gq,4)} offset:{L_AX+comp*4096+gq*1024}")
    stamp("i2", True)
    k(f"s_cmp_eq_u32 s{S_LAY}, 3\ns_cbranch_scc1 L_final")
    k(f"s_lshl_b32 s41, s{S_LAY}, 21\ns_lshl_b32 s42, s2, 6\ns_add_u32 s41, s41, s42\ns_add_u32 s41, s41, {WS_H1}")
    k("s_waitcnt lgkmcnt(0)\ns_barrier")
    for c in range(2):
        for comp in range(2):
            for w in range(2):
                k(f"ds_read_b128 {vr(WU+c*16+w*8+comp*4,4)}, v29 offset:{L_AX+(2*c+w)*8192+comp*4096}")
    n = 0
    for c in range(2):
        for comp in range(2):
            k(f"s_waitcnt lgkmcnt({6-2*n})"); n += 1
            for hh in range(2):
                b0, b1 = vr(WU + c*16 + comp*4 + 2*hh, 2), vr(WU + c*16 + 8 + comp*4 + 2*hh, 2)
                x1, x2 = vr(DA + c*16 + comp*4 + 2*hh, 2), vr(DA + c*16 + 8 + comp*4 + 2*hh, 2)
                k(f"v_pk_add_f32 {x1}, {x1}, {b0}\nv_pk_add_f32 {x2}, {x2}, {b0}")
                k(f"v_pk_add_f32 {x1}, {x1}, {b1}\nv_pk_add_f32 {x2}, {x2}, {b1} neg_lo:[0,1] neg_hi:[0,1]")
    if stop and stop.startswith("layer"):
        nn = int(stop[5:])
        L = lab("ck")
        k(f"s_cmp_lg_u32 s{S_LAY}, {nn}\ns_cbranch_scc1 {L}")
        dbg_dump(list(range(DA, DA+32)))
        k.label(L)
    deferred.append(psum(DA, TMP, P0))
    k("s_waitcnt vmcnt(0)")
    for e in range(2):
        k(f"v_min_u32 v{TMP+4*e+3}, -2, v{TMP+4*e+3}")
        k(f"s_add_u32 s47, s41, {e*64*16384}")
        k(f"buffer_store_dwordx4 {vr(TMP+4*e,4)}, v{V_SC}, {sr(SRD_W,4)}, s47 offen sc1")
    stamp("h1_st", True)
    L1, L2, L3 = lab("w1"), lab("w2"), lab("w3")
    k(f"s_cmp_lg_u32 s2, 0\ns_cbranch_scc1 {L1}")
    k("s_mov_b32 s52, 0x3a800000\ns_mov_b32 s53, 0xc4800000")
    for e in range(2):
        for hh in range(2):
            x = vr(DA + 8*e + 2*hh, 2)
            k(f"v_pk_mul_f32 {vr(OP,2)}, {x}, s[52:53] op_sel_hi:[1,0]")
            k(f"v_cvt_pk_bf16_f32 v{OP+1}, v{OP}, v{OP+1}")
            k(f"v_lshlrev_b32 v{OP}, 16, v{OP+1}\nv_and_b32 v{OP+1}, 0xffff0000, v{OP+1}")
            k(f"v_pk_fma_f32 {x}, {vr(OP,2)}, s[52:53], {x} op_sel:[0,1,0] op_sel_hi:[1,1,1]")
    k.label(L1)
    k(f"s_cmp_eq_u32 s{S_LAY}, 0\ns_cbranch_scc1 {L3}")
    k(f"s_cmp_eq_u32 s{S_LAY}, 2\ns_cbranch_scc1 {L2}")
    w_unpack(A_WA, WU, WU + 16)
    k(f"s_cmp_eq_u32 s{S_SP}, 0\ns_cbranch_scc1 {L3}")
    w_unpack(A_WMA, WM, WM + 16)
    k(f"s_branch {L3}")
    k.label(L2)
    w_unpack(A_WB, WU, WU + 16)
    k(f"s_cmp_eq_u32 s{S_SP}, 0\ns_cbranch_scc1 {L3}")
    w_unpack(A_WMB, WM, WM + 16)
    k.label(L3)
    k(f"s_lshl_b32 s41, s{S_LAY}, 21\ns_add_u32 s41, s41, s59\ns_add_u32 s42, s41, {WS_H1}")
    set4(90, "s42")
    k(f"v_and_b32 v30, 3, v{V_L}\nv_lshlrev_b32 v30, 2, v30\nv_bfe_u32 v29, v{V_L}, 4, 1\nv_lshl_add_u32 v30, v29, 1, v30\nv_add_u32 v30, v30, v{V_H}")
    k(f"v_lshlrev_b32 v30, 4, v30\ns_lshl_b32 s41, s{S_V}, 2\ns_add_u32 s41, s41, {L_SM+256}\nv_add_u32 v30, s41, v30")
    k("s_waitcnt vmcnt(0)")
    stamp("wnext", True)
    poll(blk_loads(OP, 90), [OP+3, OP+7, OP+11, OP+15])
    stamp("h1_ok", True)
    for hh in range(2):
        k(f"v_pk_add_f32 {vr(OP+2*hh,2)}, {vr(OP+2*hh,2)}, {vr(OP+4+2*hh,2)}")
        k(f"v_pk_add_f32 {vr(OP+8+2*hh,2)}, {vr(OP+8+2*hh,2)}, {vr(OP+12+2*hh,2)}")
    for hh in range(2):
        k(f"v_pk_add_f32 {vr(OP+2*hh,2)}, {vr(OP+2*hh,2)}, {vr(OP+8+2*hh,2)}")
    k(f"v_permlane32_swap_b32 v{OP}, v{OP+1}\nv_permlane32_swap_b32 v{OP+2}, v{OP+3}")
    k(f"v_add_f32 v{OP}, v{OP}, v{OP+1}\nv_add_f32 v{OP+2}, v{OP+2}, v{OP+3}")
    k(f"v_permlane16_swap_b32 v{OP}, v{OP+2}")
    k(f"v_add_f32 v{OP}, v{OP}, v{OP+2}")
    k(f"v_add_f32_dpp v{OP}, v{OP}, v{OP} row_ror:8 row_mask:0xf bank_mask:0xf")
    k(f"v_add_f32_dpp v{OP}, v{OP}, v{OP} row_ror:4 row_mask:0xf bank_mask:0xf")
    k(f"ds_write_b32 v30, v{OP}")
    k("s_waitcnt lgkmcnt(0)\ns_barrier")
    Lr2 = lab("red2")
    k(f"s_cmp_lg_u32 s{S_V}, 0\ns_cbranch_scc1 {Lr2}")
    k(f"v_and_b32 v30, 15, v{V_L}\nv_lshlrev_b32 v31, 4, v30")
    k(f"ds_read_b128 {vr(OP,4)}, v31 offset:{L_SM+256}")
    k(f"v_lshrrev_b32 v31, 4, v{V_L}\nv_lshlrev_b32 v31, 13, v31\nv_lshl_add_u32 v30, v30, 2, v31")
    k(f"s_lshl_b32 s41, s{S_LAY}, 16\ns_lshr_b32 s42, s2, 7\ns_lshl_b32 s42, s42, 15\ns_add_u32 s41, s41, s42\ns_lshr_b32 s42, s59, 8\ns_add_u32 s41, s41, s42\ns_add_u32 s41, s41, {WS_H2}")
    k("s_waitcnt lgkmcnt(0)")
    k(f"v_pk_add_f32 {vr(OP,2)}, {vr(OP,2)}, {vr(OP+2,2)}\nv_add_f32 v{OP}, v{OP}, v{OP+1}")
    k(f"v_mov_b32 v{OP+1}, 0x36000000\nv_fma_f32 v{OP}, v{OP}, v{OP+1}, v23")
    sd_from_var(OP)
    k(f"v_rcp_f32 v{OP}, v{OP}")
    k(f"v_min_u32 v{OP}, -2, v{OP}")
    k(f"buffer_store_dword v{OP}, v30, {sr(SRD_W,4)}, s41 offen sc1")
    k.label(Lr2)
    stamp("red", True)
    L = lab("wb")
    k(f"s_cmp_lg_u32 s{S_LAY}, 0\ns_cbranch_scc1 {L}")
    k(f"s_add_u32 s42, s63, {WS_WB}\ns_add_u32 s43, s42, {256*16384}")
    for i in range(4): k(ld4(WU+16+4*i, V_L16, "s42", 1024*i))
    Lx = lab("wbx")
    k(f"s_cmp_eq_u32 s{S_SP}, 0\ns_cbranch_scc1 {Lx}")
    for i in range(4): k(ld4(WM+16+4*i, V_L16, "s43", 1024*i))
    k("s_waitcnt vmcnt(0)")
    for r in range(16): k(f"v_accvgpr_write_b32 a{A_WMB+r}, v{WM+16+r}")
    w_unpack_v(WM+16, WM, WM+16)
    k.label(Lx)
    k("s_waitcnt vmcnt(0)")
    for r in range(16): k(f"v_accvgpr_write_b32 a{A_WB+r}, v{WU+16+r}")
    w_unpack_v(WU+16, WU, WU+16)
    k.label(L)
    k(f"s_lshl_b32 s42, s{S_LAY}, 16\ns_and_b32 s43, s2, 7\ns_lshl_b32 s43, s43, 13\ns_add_u32 s42, s42, s43\ns_add_u32 s42, s42, s61\ns_add_u32 s42, s42, {WS_H2}\ns_add_u32 s43, s42, 4096")
    poll([ld4(RS, V_L16, "s42"), ld4(RS+4, V_L16, "s43")], [RS+j for j in range(8)])
    stamp("h2_ok", True)
    for c in range(2):
        for comp in range(2):
            o = OP + 8*c + 4*comp
            for hh in range(2):
                x1, x2 = vr(DA + c*16 + comp*4 + 2*hh, 2), vr(DA + c*16 + 8 + comp*4 + 2*hh, 2)
                t = TMP + 4*hh
                k(f"v_pk_mul_f32 {x1}, {x1}, {vr(RS+2*hh,2)}")
                k(f"v_pk_fma_f32 {vr(t,2)}, {x2}, {vr(RS+4+2*hh,2)}, {x1}")
                k(f"v_pk_fma_f32 {vr(t+2,2)}, {x2}, {vr(RS+4+2*hh,2)}, {x1} {NEG2}")
                k(f"v_cvt_pk_bf16_f32 v{o+hh}, v{t}, v{t+1}\nv_cvt_pk_bf16_f32 v{o+2+hh}, v{t+2}, v{t+3}")
            for w in range(2):
                k(f"ds_write_b64 v{V_QT}, {vr(o+2*w,2)} offset:{L_OPS+c*8192+w*4096+comp*2048}")
    k(f"s_add_u32 s{S_LAY}, s{S_LAY}, 1")
    k("s_waitcnt lgkmcnt(0)")
    k("s_branch L_layer")
    k.label("L_final")
    k(f"v_lshrrev_b32 v28, 2, v{V_TID}")
    k("v_and_b32 v27, 3, v28\nv_bfe_u32 v26, v28, 3, 2\nv_lshl_or_b32 v27, v26, 2, v27\nv_bfe_u32 v26, v28, 2, 1\nv_lshl_or_b32 v27, v26, 4, v27")
    k("v_lshrrev_b32 v26, 5, v28\nv_lshl_add_u32 v27, v26, 7, v27\nv_lshlrev_b32 v27, 14, v27")
    k(f"v_and_b32 v26, 3, v{V_TID}\nv_lshl_add_u32 v27, v26, 4, v27")
    k(f"v_lshlrev_b32 v29, 2, v{V_TID}")
    k(f"s_lshl_b32 s41, s2, 6\ns_add_u32 s41, s41, {WS_E1}")
    k("s_waitcnt lgkmcnt(0)\ns_barrier")
    def fo(v, comp, kk): return (L_AX + v*8192 + comp*4096 + kk*1024) // 256
    for kk in range(4):
        b = DA + 8*kk
        k(f"ds_read2st64_b32 {vr(b,2)}, v29 offset0:{fo(0,0,kk)} offset1:{fo(2,0,kk)}")
        k(f"ds_read2st64_b32 {vr(b+2,2)}, v29 offset0:{fo(1,0,kk)} offset1:{fo(3,0,kk)}")
        k(f"ds_read2st64_b32 {vr(b+4,2)}, v29 offset0:{fo(0,1,kk)} offset1:{fo(2,1,kk)}")
        k(f"ds_read2st64_b32 {vr(b+6,2)}, v29 offset0:{fo(1,1,kk)} offset1:{fo(3,1,kk)}")
    SUB = "neg_lo:[0,1] neg_hi:[0,1]"
    k("s_cmp_eq_u32 s2, 0\ns_cselect_b64 s[44:45], -1, 0")
    for kk in range(4):
        b = DA + 8*kk; o = OP + 4*kk; y = TMP; t = TMP + 8
        k(f"s_waitcnt lgkmcnt({4*(3-kk)})")
        k(f"v_pk_add_f32 {vr(y,2)}, {vr(b,2)}, {vr(b+2,2)}")
        k(f"v_pk_add_f32 {vr(y+2,2)}, {vr(b,2)}, {vr(b+2,2)} {SUB}")
        k(f"v_pk_add_f32 {vr(y+4,2)}, {vr(b+4,2)}, {vr(b+6,2)}")
        k(f"v_pk_add_f32 {vr(y+6,2)}, {vr(b+4,2)}, {vr(b+6,2)} {SUB}")
        k(f"v_pk_add_f32 {vr(t,2)}, {vr(y,2)}, {vr(y+6,2)} {SUB}")
        k(f"v_pk_add_f32 {vr(t+2,2)}, {vr(y+4,2)}, {vr(y+2,2)}")
        k(f"v_pk_add_f32 {vr(t+4,2)}, {vr(y,2)}, {vr(y+6,2)}")
        k(f"v_pk_add_f32 {vr(t+6,2)}, {vr(y+2,2)}, {vr(y+4,2)} {SUB}")
        k(f"v_cvt_pk_bf16_f32 v{o}, v{t}, v{t+2}")
        k(f"v_cvt_pk_bf16_f32 v{o+1}, v{t+5}, v{t+7}")
        k(f"v_cvt_pk_bf16_f32 v{o+2}, v{t+1}, v{t+3}")
        k(f"v_cvt_pk_bf16_f32 v{o+3}, v{t+4}, v{t+6}")
        k("s_mov_b64 exec, s[44:45]")
        k(f"v_cvt_pk_bf16_f32 v{o}, v{y}, v{y+2}")
        k(f"v_cvt_pk_bf16_f32 v{o+1}, v{y+4}, v{y+6}")
        k(f"v_cvt_pk_bf16_f32 v{o+3}, v{t+5}, v{t+7}")
        k("s_mov_b64 exec, -1")
        k(f"v_min_u32 v{o+3}, -2, v{o+3}")
        k(f"s_add_u32 s47, s41, {kk*32*16384}")
        k(f"buffer_store_dwordx4 {vr(o,4)}, v27, {sr(SRD_W,4)}, s47 offen sc1")
    stamp("e1_st")
    k(f"v_mul_f32 v28, 0x3d000000, v{V_PIF}\nv_mul_f32 v27, v28, v{V_H16}\nv_mul_f32 v27, 0.5, v27")
    k("s_mov_b32 s62, 0x3a800000")
    angles(DA, DA + 16, 27, 28, n=8, scale="s[62:63]")
    k(f"v_and_b32 v26, 1, v{V_PI}\nv_mul_u32_u24 v26, 0x8000, v26\nv_lshl_or_b32 v26, v26, 16, v26")
    for n in range(8):
        u, e2 = n >> 1, n & 1
        c, s = DA + n, DA + 16 + n
        t = TMP + 4 * (n % 2)
        k(f"v_cvt_pk_bf16_f32 v{t}, v{c}, -v{s}\nv_cvt_pk_bf16_f32 v{t+1}, v{s}, v{c}")
        k(f"v_xor_b32 v{t+2}, v26, v{t}\nv_xor_b32 v{t+3}, v26, v{t+1}")
        k(f"v_accvgpr_write_b32 a{A_R4+4*u+2*e2}, v{t}\nv_accvgpr_write_b32 a{A_R4+16+4*u+2*e2}, v{t+1}")
        k(f"v_accvgpr_write_b32 a{A_R4+4*u+2*e2+1}, v{t+2}\nv_accvgpr_write_b32 a{A_R4+16+4*u+2*e2+1}, v{t+3}")
    k(f"v_mul_f32 v28, 0x3a800000, v{V_PIF}\nv_mul_f32 v27, v28, v{V_H16}")
    angles(TF, TF + 16, 27, 28)
    for e in range(2): mfma(BA + 16*e, ar(A_ID, 4), ar(A_XA+8*e, 4), "0")
    for e in range(2): mfma(BA + 16*e, ar(A_ID+4, 4), ar(A_XA+8*e+4, 4), vr(BA+16*e, 16))
    k(f"v_lshrrev_b32 v28, 2, v{V_TID}\nv_and_b32 v29, 3, v{V_TID}\nv_lshlrev_b32 v29, 12, v29\nv_add_u32 v29, {L_RQ}, v29")
    def rqaddr(dst, j):
        k(f"v_and_b32 v25, 31, v{j}")
        pinv(24, 25, 23)
        k(f"v_lshl_add_u32 v{dst}, v24, 4, v29")
        k(f"v_bfe_u32 v24, v{j}, 5, 1\nv_lshl_add_u32 v{dst}, v24, 3, v{dst}")
        k(f"v_bfe_u32 v24, v{j}, 6, 2\nv_lshl_add_u32 v{dst}, v24, 10, v{dst}")
        k(f"v_bfe_u32 v24, v{j}, 8, 1\nv_lshl_add_u32 v{dst}, v24, 9, v{dst}")
    rqaddr(P0, 28)
    for kk in range(4):
        k(f"v_add_u32 v26, {kk*64}, v28\nv_sub_u32 v27, 0x200, v26")
        if kk == 0:
            k("v_cmp_eq_u32 vcc, 0, v26\nv_mov_b32 v24, 0x100\nv_cndmask_b32 v27, v27, v24, vcc")
        rqaddr(P0 + 1 + kk, 27)
    k(f"s_add_u32 s42, s58, {WS_E1}")
    set4(90, "s42")
    k("s_waitcnt vmcnt(0)")
    stamp("tab4")
    poll(blk_loads(DA, 90), [DA+3, DA+7, DA+11, DA+15])
    stamp("e1_ok")
    for kk in range(4):
        k(f"ds_write_b64 v{P0}, {vr(DA+4*kk,2)} offset:{kk*1024}")
        k(f"ds_write_b64 v{P0+1+kk}, {vr(DA+4*kk+2,2)}")
    k("s_waitcnt lgkmcnt(0)\ns_barrier")
    for u in range(4):
        k(f"ds_read_b128 {vr(OP+4*u,4)}, v{V_OWN} offset:{L_RQ+1024*u}")
    for u in range(4):
        k(f"s_waitcnt lgkmcnt({3-u})")
        mfma(DA, vr(OP+4*u, 4), ar(A_R4+4*u, 4), "0" if u == 0 else vr(DA, 16))
        mfma(DA+16, vr(OP+4*u, 4), ar(A_R4+16+4*u, 4), "0" if u == 0 else vr(DA+16, 16))
    cmul_pack(DA, TF, OP, True)
    dft(BA, OP, A_F0, True, True, True)
    for e in range(2):
        for p in range(8):
            k(f"v_cvt_pk_bf16_f32 v{OP+8*e+p}, v{BA+16*e+2*p}, v{BA+16*e+2*p+1}")
        for t in range(2):
            k(f"buffer_store_dwordx4 {vr(OP+8*e+4*t,4)}, v{V_XO}, {sr(SRD_O,4)}, s{50+e} offen offset:{16*t}")
    stamp("out_st")
    if prof:
        k("s_waitcnt vmcnt(0)")
        stamp("end")
        dbg_dump([22])
    k("s_endpgm")
    flush_deferred(k, deferred)
    Ls, Le = sp_pw
    k.label(Ls)
    k(f"s_mul_i32 s41, s{S_E}, {2*REV_C}\ns_add_u32 s41, s41, {L_REV}")
    k(f"v_lshlrev_b32 v30, 9, v{V_H}\nv_add_u32 v30, v30, v{V_PI}")
    k(f"v_add_u32 v29, s{S_E}, v30\nv_sub_u32 v29, {1024 - 15*32}, v29\nv_lshlrev_b32 v29, 2, v29\nv_add_u32 v29, s41, v29")
    k("v_lshlrev_b32 v30, 2, v30\nv_add_u32 v30, s41, v30")
    k("s_nop 7")
    for comp in range(2):
        for r in range(0, 16, 2):
            pass
    for half in range(2):
        pass
    for comp in range(2):
        for r in range(16):
            k(f"ds_write_b32 v30, v{DA+16*comp+r} offset:{comp*REV_C+128*r}")
    k("s_mov_b64 exec, 1")
    for comp in range(2):
        k(f"ds_write_b32 v30, v{DA+16*comp} offset:{comp*REV_C+4096}")
    k("s_mov_b64 exec, -1")
    for p in range(8):
        re, im = vr(DA+2*p, 2), vr(DA+16+2*p, 2)
        c, s = vr(WU+2*p, 2), vr(WU+16+2*p, 2)
        t = TMP + 4 * (p % 2)
        k(f"v_pk_mul_f32 {vr(t,2)}, {re}, {c}\nv_pk_mul_f32 {vr(t+2,2)}, {re}, {s}")
        k(f"v_pk_fma_f32 {re}, {im}, {s}, {vr(t,2)} {NEG2}")
        k(f"v_pk_fma_f32 {im}, {im}, {c}, {vr(t+2,2)}")
        if p == 1:
            k("s_waitcnt lgkmcnt(0)")
            for r in range(16): k(f"ds_read_b32 v{OP+r}, v29 offset:{128*(15-r)}")
    for r in range(16): k(f"ds_read_b32 v{WU+r}, v29 offset:{REV_C+128*(15-r)}")
    k("s_waitcnt lgkmcnt(15)")
    k("s_waitcnt lgkmcnt(8)")
    for p in range(8):
        re, im = vr(DA+2*p, 2), vr(DA+16+2*p, 2)
        mc, ms = vr(WM+2*p, 2), vr(WM+16+2*p, 2)
        er = vr(OP+2*p, 2)
        k(f"v_pk_fma_f32 {re}, {er}, {mc}, {re}\nv_pk_fma_f32 {im}, {er}, {ms}, {im}")
    k("s_waitcnt lgkmcnt(0)")
    for p in range(8):
        re, im = vr(DA+2*p, 2), vr(DA+16+2*p, 2)
        mc, ms = vr(WM+2*p, 2), vr(WM+16+2*p, 2)
        ei = vr(WU+2*p, 2)
        k(f"v_pk_fma_f32 {re}, {ei}, {ms}, {re}\nv_pk_fma_f32 {im}, {ei}, {mc}, {im} {NEG2}")
        k(f"v_cvt_pk_bf16_f32 v{OP+p}, v{DA+2*p}, v{DA+2*p+1}\nv_cvt_pk_bf16_f32 v{OP+8+p}, v{DA+16+2*p}, v{DA+16+2*p+1}")
    k("s_nop 1")
    k(f"s_branch {Le}")
    return k

def flush_deferred(k, deferred):
    for Ls, Le, X, dst in deferred:
        k.label(Ls)
        for e in range(2):
            for hh in range(2):
                d = vr(dst + 4*e + 2*hh, 2)
                xi = vr(X + 8*e + 4 + 2*hh, 2)
                k(f"v_pk_mul_f32 v[30:31], {xi}, 0.5 op_sel_hi:[1,0]\nv_pk_fma_f32 {d}, v[30:31], {xi}, {d}")
        k(f"s_branch {Le}")

HEADER = """; Kernarg layout for this problem (72 bytes, ptrs only, base s[0:1]):
"""

def emit(stop=None, listform=True, prof=False):
    k = gen(stop, prof=prof)
    k.label("L_fail")
    k("s_mov_b64 exec, -1\ns_waitcnt vmcnt(0) lgkmcnt(0)")
    k.label("L_end")
    k("s_endpgm")
    body = k.text()
    launch = f"; @launch kernel={NAME} grid=(256,1,1) block=(256,1,1) lds={LDS_BYTES}" if listform else f"; @launch grid=(256,1,1) block=(256,1,1) lds={LDS_BYTES}"
    return f"""{HEADER}{launch}
.amdgcn_target "amdgcn-amd-amdhsa--gfx950"
.text
.globl {NAME}
.p2align 8
.type {NAME},@function
{NAME}:
{body}
.fill {CODE_BYTES // 4}, 4, 0xbf800000
.section .rodata,"a"
.p2align 6
.amdhsa_kernel {NAME}
  .amdhsa_next_free_vgpr 512
  .amdhsa_next_free_sgpr 96
  .amdhsa_accum_offset 256
  .amdhsa_group_segment_fixed_size 0
  .amdhsa_kernarg_size 72
  .amdhsa_user_sgpr_count 2
  .amdhsa_user_sgpr_kernarg_segment_ptr 1
  .amdhsa_system_sgpr_workgroup_id_x 1
.end_amdhsa_kernel
"""

if __name__ == "__main__":
    stop = sys.argv[2] if len(sys.argv) > 2 else None
    open(sys.argv[1], "w").write(emit(stop))
```

```python
import sys
sys.path.insert(0, 'work')
from asmdsl import Kernel

NAME = "interleave_layers__spectral_gfnet__spectral_gfnet__prompt_kernel"

NREP    = 8
WS_EP   = 0
WS_FL   = 0x1000
WS_SM   = 0x40000
WS_S0   = WS_SM
WS_M0   = WS_SM + 0x2000
WS_V0   = WS_SM + 0x4000
WS_H2   = WS_SM + 0x6000
SM_BYTES = 0x6000 + 3 * NREP * 0x2000
WS_H1   = 0x200000
WS_E0   = 0x1000000
WS_E1   = 0x1400000
WS_WA   = 0x1800000
WS_WB   = 0x2000000
WS_DBG  = 0x3000000
WS_SIZE = 0x8000000

RO_PLANE = 1216 * 4
RO_COMP  = 4 * RO_PLANE + 32
L_OPS  = 0
L_AX   = 16384
L_SM   = 49152
L_RQ   = L_OPS
L_RO   = 50176
WSEG   = 528
L_WS   = L_RO + 39168
L_WS2  = L_WS + 16896
L_REV  = L_WS2 + 16896
REV_ROW = 36 * 4
REV_C  = 33 * REV_ROW + 48
LDS_BYTES = L_REV + 4 * REV_C

V_TID, V_L, V_PI, V_H, V_PIF, V_L16, V_T16 = 0, 1, 2, 3, 4, 5, 6
V_XO, V_H16, V_SC, V_OWN, V_QT = 7, 8, 9, 10, 11
P0 = 12
V_SC0 = 21
TF, TI, WU, DA, BA, WM, OP, TMP = 32, 64, 96, 128, 160, 192, 224, 240
RS = TMP + 8
A_F0, A_SA, A_IB, A_ID, A_XA, A_XH, A_WA, A_WB, A_WMA, A_WMB, A_R4 = 0, 24, 48, 72, 80, 96, 128, 144, 160, 176, 192
A_LB = 224
SRD_X, SRD_O, SRD_W, SRD_D, SRD_AR, SRD_AI, SRD_BR, SRD_BI = 4, 8, 12, 16, 20, 24, 28, 32
S_V, S_E, S_C, S_SP, S_LAY = 36, 37, 38, 39, 40
SPIN_MAX = 1 << 16
CODE_BYTES = 32768

def vr(b, n): return f"v[{b}:{b+n-1}]"
def ar(b, n): return f"a[{b}:{b+n-1}]"
def sr(b, n): return f"s[{b}:{b+n-1}]"

STAMPS = []
def gen(stop=None, prof=False):
    k = Kernel()
    uid = [0]
    STAMPS.clear()
    def lab(p):
        uid[0] += 1
        return f"L_{p}_{uid[0]}"
    def stamp(name, loop=False):
        if not prof: return
        k("s_memrealtime s[84:85]\ns_waitcnt lgkmcnt(0)")
        if loop:
            ln = [x[0] for x in STAMPS if x[1]]
            if name not in ln: STAMPS.append((name, True)); ln.append(name)
            idx = ln.index(name)
            k(f"s_mul_i32 s86, s{S_LAY}, 10\ns_add_u32 s86, s86, {24+idx}\ns_mov_b32 m0, s86\ns_nop 0\nv_writelane_b32 v22, s84, m0")
        else:
            idx = len([x for x in STAMPS if not x[1]])
            STAMPS.append((name, False))
            k(f"v_writelane_b32 v22, s84, {idx}")
    def dbg_dump(regs, kind='v'):
        N = len(regs)
        k(f"s_lshl_b32 s41, s2, 2\ns_add_u32 s41, s41, s{S_V}\ns_mul_i32 s41, s41, {N*256}\ns_add_u32 s41, s41, {WS_DBG}")
        k(f"v_lshlrev_b32 v31, 2, v{V_L}")
        k("s_nop 15\ns_nop 15")
        for r in regs:
            k(f"buffer_store_dword {kind}{r}, v31, {sr(SRD_W,4)}, s41 offen")
            k("s_add_u32 s41, s41, 256")
        k("s_waitcnt vmcnt(0)\ns_endpgm")
    def checkpoint(name, regs=None, kind='v'):
        if stop == name:
            if regs is not None: dbg_dump(regs, kind)
            else: k("s_waitcnt vmcnt(0) lgkmcnt(0)\ns_endpgm")
            return True
        return False
    def mfma(d, a, b, c): k(f"v_mfma_f32_32x32x16_bf16 {vr(d,16)}, {a}, {b}, {c}")
    def dft(dst, op, fam, data_is_A, inverse, acc, fill=None, per=5, midwait=None):
        C, S, nS = fam, fam + 8, fam + 16
        s_re, s_im = (nS, S) if inverse else (S, nS)
        for t in (0, 1):
            if t == 1 and midwait: k(midwait)
            xr, xi = vr(op + 4*t, 4), vr(op + 8 + 4*t, 4)
            for n, (d, x, m) in enumerate([(dst, xr, C), (dst + 16, xi, C), (dst, xi, s_re), (dst + 16, xr, s_im)]):
                cst = ar(m + 4*t, 4)
                cin = "0" if (not acc and t == 0 and n < 2) else vr(d, 16)
                if data_is_A: mfma(d, x, cst, cin)
                else: mfma(d, cst, x, cin)
                if fill:
                    for _ in range(per):
                        if fill: k(fill.pop(0))
    def lines(txt): return [x for x in txt.split("\n") if x.strip()]
    NEG2 = "neg_lo:[0,1,0] neg_hi:[0,1,0]"
    def cmul_pack(src, tab, op, conj):
        for p in range(8):
            re, im = vr(src + 2*p, 2), vr(src + 16 + 2*p, 2)
            c, s = vr(tab + 2*p, 2), vr(tab + 16 + 2*p, 2)
            t1, t2 = TMP + (p % 2) * 4, TMP + (p % 2) * 4 + 2
            k(f"v_pk_mul_f32 {vr(t1,2)}, {re}, {c}")
            k(f"v_pk_mul_f32 {vr(t2,2)}, {im}, {c}")
            k(f"v_pk_fma_f32 {vr(t1,2)}, {im}, {s}, {vr(t1,2)} {NEG2 if conj else ''}")
            k(f"v_pk_fma_f32 {vr(t2,2)}, {re}, {s}, {vr(t2,2)} {'' if conj else NEG2}")
            k(f"v_cvt_pk_bf16_f32 v{op+p}, v{t1}, v{t1+1}")
            k(f"v_cvt_pk_bf16_f32 v{op+8+p}, v{t2}, v{t2+1}")
    def angles(dc, ds, v_start, v_step, n=16, scale=None):
        k(f"v_add_f32 v23, v{v_start}, v{v_step}")
        k(f"v_cos_f32 v{dc}, v{v_start}\nv_sin_f32 v{ds}, v{v_start}\nv_cos_f32 v{dc+1}, v23\nv_sin_f32 v{ds+1}, v23")
        k(f"v_add_f32 v23, v{v_step}, v{v_step}")
        k("v_cos_f32 v20, v23\nv_sin_f32 v21, v23")
        if scale is not None:
            k(f"v_pk_mul_f32 {vr(dc,2)}, {vr(dc,2)}, {scale} op_sel_hi:[1,0]\nv_pk_mul_f32 {vr(ds,2)}, {vr(ds,2)}, {scale} op_sel_hi:[1,0]")
        for p in range(1, n // 2):
            C0, S0, C1, S1 = vr(dc+2*p-2, 2), vr(ds+2*p-2, 2), vr(dc+2*p, 2), vr(ds+2*p, 2)
            k(f"v_pk_mul_f32 {C1}, {C0}, v[20:21] op_sel_hi:[1,0]")
            k(f"v_pk_mul_f32 {S1}, {S0}, v[20:21] op_sel_hi:[1,0]")
            k(f"v_pk_fma_f32 {C1}, {S0}, v[20:21], {C1} op_sel:[0,1,0] op_sel_hi:[1,1,1] {NEG2}")
            k(f"v_pk_fma_f32 {S1}, {C0}, v[20:21], {S1} op_sel:[0,1,0] op_sel_hi:[1,1,1]")
    def family(fam, c, s):
        for p in range(8):
            t = TMP + 4 * (p % 2)
            k(f"v_cvt_pk_bf16_f32 v{t}, v{c+2*p}, v{c+2*p+1}")
            k(f"v_cvt_pk_bf16_f32 v{t+1}, v{s+2*p}, v{s+2*p+1}")
            k(f"v_cvt_pk_bf16_f32 v{t+2}, -v{s+2*p}, -v{s+2*p+1}")
            for i in range(3): k(f"v_accvgpr_write_b32 a{fam+8*i+p}, v{t+i}")
    def rne_bf16(dst, src):
        k(f"v_cvt_pk_bf16_f32 v{dst}, v{src}, v{src}\nv_and_b32 v{dst}, 0xffff0000, v{dst}")
    def sd_from_var(v):
        k(f"v_max_f32 v{v}, 0, v{v}")
        rne_bf16(v, v)
        k(f"v_add_f32 v{v}, 0x3727c5ac, v{v}")
        rne_bf16(v, v)
        k(f"v_sqrt_f32 v{v}, v{v}")
        rne_bf16(v, v)
    def poll(loads, words, kind='v'):
        L = lab("pb")
        k("s_mov_b32 s46, 0")
        k.label(L)
        for x in loads: k(x)
        k("s_waitcnt vmcnt(0)")
        k(f"v_max_u32 v31, v{words[0]}, v{words[1]}")
        rest = words[2:]
        while len(rest) >= 2:
            k(f"v_max3_u32 v31, v31, v{rest[0]}, v{rest[1]}"); rest = rest[2:]
        if rest: k(f"v_max_u32 v31, v31, v{rest[0]}")
        k("v_cmp_eq_u32 vcc, -1, v31")
        k(f"s_add_u32 s46, s46, 1\ns_cmp_ge_u32 s46, {SPIN_MAX}\ns_cbranch_scc1 L_fail")
        k("s_mov_b64 exec, vcc")
        k(f"s_cbranch_execnz {L}")
        k("s_mov_b64 exec, -1")
    def ld4(dst, voff, soff, off=0, kind='v'):
        d = vr(dst, 4) if kind == 'v' else ar(dst, 4)
        return f"buffer_load_dwordx4 {d}, v{voff}, {sr(SRD_W,4)}, {soff} offen offset:{off} sc1"
    def blk_loads(dst, sbase):
        return [ld4(dst + 4*i, V_T16, f"s{sbase+i}") for i in range(4)]
    def set4(sb, expr_s):
        k(f"s_mov_b32 s{sb}, {expr_s}")
        for i in range(1, 4): k(f"s_add_u32 s{sb+i}, {expr_s}, {4096*i}")
    def pinv(dst, src, t):
        k(f"v_and_b32 v{dst}, 3, v{src}")
        k(f"v_bfe_u32 v{t}, v{src}, 4, 1\nv_lshl_or_b32 v{dst}, v{t}, 2, v{dst}")
        k(f"v_bfe_u32 v{t}, v{src}, 2, 2\nv_lshl_or_b32 v{dst}, v{t}, 3, v{dst}")
    def init_block(sreg, n=4):
        for i in range(n):
            k(f"s_add_u32 s47, {sreg}, {4096*i}")
            k(f"buffer_store_dwordx4 v[24:27], v{V_T16}, {sr(SRD_W,4)}, s47 offen sc1")

    def wprep_setup():
        k("s_lshr_b32 s41, s2, 2\ns_and_b32 s41, s41, 7")
        k("s_lshr_b32 s42, s41, 1\ns_lshl_b32 s42, s42, 2\ns_and_b32 s43, s41, 1\ns_lshl_b32 s43, s43, 4\ns_or_b32 s42, s42, s43")
        k("s_lshl_b32 s42, s42, 1\ns_lshr_b32 s43, s2, 1\ns_and_b32 s43, s43, 1\ns_add_u32 s42, s42, s43")
        k("s_lshr_b32 s43, s2, 5\ns_lshl_b32 s43, s43, 8\ns_add_u32 s56, s42, s43")
        k("s_and_b32 s42, s2, 1\ns_lshl_b32 s42, s42, 1\ns_lshr_b32 s43, s2, 1\ns_and_b32 s43, s43, 1\ns_add_u32 s42, s42, s43\ns_lshl_b32 s57, s42, 12")
        k("s_lshr_b32 s42, s2, 5\ns_and_b32 s43, s42, 3\ns_lshl_b32 s43, s43, 10\ns_add_u32 s57, s57, s43")
        k("s_lshr_b32 s42, s42, 2\ns_lshl_b32 s42, s42, 9\ns_add_u32 s57, s57, s42\ns_lshl_b32 s41, s41, 6\ns_add_u32 s57, s57, s41")
    def wprep_addr():
        k(f"s_lshl_b32 s41, s{S_V}, 6\ns_add_u32 s41, s41, s56\ns_mul_i32 s41, s41, 1026\ns_and_b32 s42, s2, 1\ns_lshl_b32 s42, s42, 9\ns_add_u32 s41, s41, s42\ns_and_b32 s41, s41, -4")
        k(f"v_and_b32 v28, 31, v{V_L}\nv_lshlrev_b32 v28, 4, v28\nv_mul_u32_u24 v29, 2052, v{V_H}\nv_add_u32 v28, v28, v29")
        k(f"v_and_b32 v29, 3, v{V_L}\nv_mul_u32_u24 v29, 2052, v29")
        k("s_add_u32 s42, s41, 4104")
    def wprep_load(srd_r, srd_i, dst, kind):
        R = (lambda b, n: vr(b, n)) if kind == 'v' else (lambda b, n: ar(b, n))
        for a, srd in enumerate((srd_r, srd_i)):
            k(f"buffer_load_dwordx4 {R(dst+8*a,4)}, v28, {sr(srd,4)}, s41 offen")
            k(f"buffer_load_dwordx4 {R(dst+8*a+4,4)}, v28, {sr(srd,4)}, s42 offen")
            k(f"buffer_load_dword {kind}{dst+16+a}, v29, {sr(srd,4)}, s41 offen offset:512")
    def wprep_load_special():
        L = lab("wsl")
        k(f"v_bfe_u32 v30, v{V_L}, 2, 2\nv_and_b32 v31, 3, v{V_L}\nv_lshlrev_b32 v31, 6, v31\nv_lshl_add_u32 v30, v30, 1, v31\nv_add_u32 v30, s56, v30")
        k("v_sub_u32 v31, 0x800, v30\nv_and_b32 v31, 0x7ff, v31\nv_mul_u32_u24 v30, 1026, v30\nv_mul_u32_u24 v31, 1026, v31")
        k(f"s_and_b32 s43, s2, 1\ns_or_b32 s43, s43, s{S_V}\ns_cmp_lg_u32 s43, 0\ns_cbranch_scc1 {L}")
        for kind, dst, srds in (('v', WU + 18, (SRD_AR, SRD_AI)), ('a', A_LB + 18, (SRD_BR, SRD_BI))):
            n = 0
            for srd in srds:
                for col in (0, 1024):
                    for va in (30, 31):
                        k(f"buffer_load_ushort {kind}{dst+n}, v{va}, {sr(srd,4)}, 0 offen offset:{col}"); n += 1
        k.label(L)
    def wprep_lds_write(src, kind, base):
        R = (lambda b, n: vr(b, n)) if kind == 'v' else (lambda b, n: ar(b, n))
        k(f"s_mul_i32 s41, s{S_V}, {4*WSEG}\ns_add_u32 s41, s41, {base}")
        k(f"v_and_b32 v30, 31, v{V_L}\nv_lshlrev_b32 v30, 4, v30\nv_mul_u32_u24 v31, {WSEG}, v{V_H}\nv_add3_u32 v30, v30, v31, s41")
        k(f"v_and_b32 v31, 3, v{V_L}\nv_mul_u32_u24 v31, {WSEG}, v31\nv_add_u32 v31, s41, v31")
        for a in range(2):
            k(f"ds_write_b128 v30, {R(src+8*a,4)} offset:{a*16*WSEG}")
            k(f"ds_write_b128 v30, {R(src+8*a+4,4)} offset:{a*16*WSEG+2*WSEG}")
            k(f"ds_write_b32 v31, {kind}{src+16+a} offset:{a*16*WSEG+512}")
    def wprep_gather(wsbase, dst, hi, base, sa, va):
        o = []
        A = lambda t: o.extend(lines(t))
        A(f"v_lshrrev_b32 v{va}, 2, v{V_TID}\nv_and_b32 v{va+1}, 3, v{V_TID}\nv_mul_u32_u24 v{va+1}, {WSEG}, v{va+1}")
        A(f"s_and_b32 s{sa}, s2, 2\ns_add_u32 s{sa}, s{sa}, {base}\nv_add_u32 v{va+1}, s{sa}, v{va+1}")
        A(f"s_and_b32 s{sa+1}, s2, 1\ns_sub_u32 s{sa+1}, 0, s{sa+1}")
        for kk in range(4):
            A(f"v_add_u32 v{va+2}, {kk*64}, v{va}\nv_xor_b32 v{va+2}, s{sa+1}, v{va+2}\nv_subrev_u32 v{va+2}, s{sa+1}, v{va+2}\nv_and_b32 v{va+2}, 0xff, v{va+2}")
            A(f"v_lshl_add_u32 v{va+2}, v{va+2}, 1, v{va+1}")
            for i in range(4):
                A(f"ds_read_u16 v{dst+4*kk+i}, v{va+2} offset:{i*4*WSEG}")
                A(f"ds_read_u16 v{hi+4*kk+i}, v{va+2} offset:{(16+i*4)*WSEG}")
        A(f"s_add_u32 s{sa}, s57, {wsbase}")
        for kk in range(4):
            A(f"s_waitcnt lgkmcnt({15 if kk < 2 else 8*(3-kk)})")
            for i in range(4): A(f"v_lshl_or_b32 v{dst+4*kk+i}, v{hi+4*kk+i}, 16, v{dst+4*kk+i}")
            A(f"s_add_u32 s{sa+1}, s{sa}, {kk*64*16384}")
            A(f"buffer_store_dwordx4 {vr(dst+4*kk,4)}, v{V_SC0 if kk == 0 else V_SC}, {sr(SRD_W,4)}, s{sa+1} offen sc1")
        return o
    def wprep_special(wsbase, sp, sp_a=None):
        L = lab("wsp")
        k(f"s_and_b32 s42, s2, 1\ns_or_b32 s42, s42, s{S_V}\ns_cmp_lg_u32 s42, 0\ns_cbranch_scc1 {L}")
        if sp_a is not None:
            for n in range(8): k(f"v_accvgpr_read_b32 v{sp+n}, a{sp_a+n}")
        for n in range(8): k(f"v_lshlrev_b32 v{sp+n}, 16, v{sp+n}")
        k(f"v_add_f32 v{sp}, v{sp}, v{sp+1}\nv_add_f32 v{sp+2}, v{sp+2}, v{sp+3}\nv_sub_f32 v{sp+4}, v{sp+4}, v{sp+5}\nv_sub_f32 v{sp+6}, v{sp+6}, v{sp+7}")
        k(f"v_add_f32 v{sp+1}, v{sp}, v{sp+2}\nv_sub_f32 v{sp+3}, v{sp}, v{sp+2}\nv_add_f32 v{sp+5}, v{sp+4}, v{sp+6}\nv_sub_f32 v{sp+7}, v{sp+4}, v{sp+6}")
        for n in (1, 3, 5, 7): k(f"v_mul_f32 v{sp+n}, 0x3e800000, v{sp+n}")
        k(f"v_cvt_pk_bf16_f32 v{sp}, v{sp+1}, v{sp+5}\nv_cvt_pk_bf16_f32 v{sp+2}, v{sp+3}, v{sp+7}")
        k(f"v_lshlrev_b32 v30, 2, v{V_L}")
        k(f"s_add_u32 s41, s57, {wsbase}\ns_add_u32 s47, s41, {256*16384}")
        k("s_mov_b64 exec, 0xffff")
        k(f"buffer_store_dword v{sp}, v30, {sr(SRD_W,4)}, s41 offen sc1")
        k(f"buffer_store_dword v{sp+2}, v30, {sr(SRD_W,4)}, s47 offen sc1")
        k("s_mov_b64 exec, -1")
        k.label(L)
    def w_unpack_v(src, dre, dim):
        for r in range(16):
            k(f"v_lshlrev_b32 v{dre+r}, 16, v{src+r}\nv_and_b32 v{dim+r}, 0xffff0000, v{src+r}")
    def w_unpack(a_w, dre, dim):
        for r in range(16): k(f"v_accvgpr_read_b32 v{dim+r}, a{a_w+r}")
        w_unpack_v(dim, dre, dim)

    k(f"s_cmp_ge_u32 s2, 256\ns_cbranch_scc1 L_end")
    k("s_load_dwordx16 s[64:79], s[0:1], 0\ns_load_dwordx2 s[80:81], s[0:1], 64")
    k("s_getpc_b64 s[82:83]")
    k(f"v_lshlrev_b32 v30, 7, v0\nv_min_u32 v30, {CODE_BYTES-4}, v30")
    k("global_load_dword a255, v30, s[82:83]")
    stamp("start")
    k(f"v_and_b32 v{V_L}, 63, v0\nv_lshrrev_b32 v30, 6, v0")
    k(f"v_lshlrev_b32 v{V_T16}, 4, v0")
    k(f"v_readfirstlane_b32 s{S_V}, v30")
    k(f"v_lshrrev_b32 v{V_H}, 5, v{V_L}\nv_lshlrev_b32 v{V_L16}, 4, v{V_L}")
    k(f"v_and_b32 v{V_PI}, 3, v0\nv_bfe_u32 v30, v0, 3, 2\nv_lshl_or_b32 v{V_PI}, v30, 2, v{V_PI}\nv_bfe_u32 v30, v0, 2, 1\nv_lshl_or_b32 v{V_PI}, v30, 4, v{V_PI}")
    k(f"v_lshlrev_b32 v{V_XO}, 6, v{V_PI}\nv_lshl_add_u32 v{V_XO}, v{V_H}, 5, v{V_XO}")
    k(f"s_lshr_b32 s41, s2, 5\ns_lshl_b32 s41, s41, 2\ns_add_u32 s41, s41, s{S_V}\ns_lshl_b32 s41, s41, 5\ns_and_b32 s42, s2, 31\ns_add_u32 s41, s41, s42")
    k("s_lshl_b32 s50, s41, 11\ns_add_u32 s51, s50, 0x200000")
    wprep_setup()
    wprep_addr()
    k("s_waitcnt lgkmcnt(0)")
    def srd(d, p, size):
        k(f"s_mov_b32 s{d}, s{p}\ns_mov_b32 s{d+1}, s{p+1}\ns_mov_b32 s{d+2}, {size}\ns_mov_b32 s{d+3}, 0x00020000")
    k(f"s_load_dword s95, s[80:81], {WS_EP}")
    srd(SRD_X, 64, 4194304)
    for e in range(2):
        for t in range(2):
            k(f"buffer_load_dwordx4 {ar(A_XA+8*e+4*t,4)}, v{V_XO}, {sr(SRD_X,4)}, s{50+e} offen offset:{16*t}")
    WB = 2048 * 513 * 2
    srd(SRD_AR, 66, WB); srd(SRD_AI, 68, WB)
    wprep_load(SRD_AR, SRD_AI, WU, 'v')
    srd(SRD_BR, 72, WB); srd(SRD_BI, 74, WB); srd(SRD_W, 80, WS_SIZE)
    wprep_load_special()
    k("s_mov_b32 s92, s41\ns_mov_b32 s93, s42\nv_mov_b32 v18, v28\nv_mov_b32 v19, v29")
    for i in range(4): k(f"v_mov_b32 v{24+i}, -1")
    k(f"s_lshl_b32 s58, s2, 14")
    k(f"s_add_u32 s42, s58, {WS_E0}");  init_block("s42")
    k(f"s_mul_i32 s43, s2, 864\ns_add_u32 s43, s43, {WS_SM}")
    k(f"v_cmp_gt_u32 vcc, 54, v0\nv_mov_b32 v29, 0x7ffffff0\nv_cndmask_b32 v30, v29, v{V_T16}, vcc")
    k(f"buffer_store_dwordx4 v[24:27], v30, {sr(SRD_W,4)}, s43 offen sc1")
    k(f"s_and_b32 s59, s2, 127\ns_lshl_b32 s59, s59, 14\ns_lshr_b32 s42, s2, 7\ns_lshl_b32 s42, s42, 13\ns_add_u32 s60, s59, s42")
    k(f"s_add_u32 s42, s60, {WS_H1}"); init_block("s42", 2)
    srd(SRD_O, 76, 4194304)
    k(f"s_and_b32 s{S_E}, s{S_V}, 1\ns_lshr_b32 s{S_C}, s{S_V}, 1")
    k(f"s_or_b32 s41, s2, s{S_C}\ns_cmp_eq_u32 s41, 0\ns_cselect_b32 s{S_SP}, 1, 0")
    stamp("issued")
    k(f"v_cvt_f32_u32 v{V_PIF}, v{V_PI}\nv_cvt_f32_u32 v{V_H16}, v{V_H}\nv_mul_f32 v{V_H16}, 0x41800000, v{V_H16}")
    k(f"v_lshlrev_b32 v28, 4, v{V_H}\nv_sub_u32 v28, v{V_PI}, v28")
    k("v_and_b32 v27, 1, v28\nv_lshlrev_b32 v27, 4, v27\nv_mov_b32 v26, 0x3f80\nv_lshlrev_b32 v26, v27, v26\nv_ashrrev_i32 v28, 1, v28")
    for p in range(8):
        k(f"v_cmp_eq_u32 vcc, {p}, v28\nv_cndmask_b32 v{TMP+p}, 0, v26, vcc")
    for p in range(8): k(f"v_accvgpr_write_b32 a{A_ID+p}, v{TMP+p}")
    k(f"v_mul_f32 v28, 0x3d000000, v{V_PIF}\nv_mul_f32 v27, v28, v{V_H16}")
    angles(DA, DA + 16, 27, 28)
    family(A_F0, DA, DA + 16)
    k(f"v_mul_f32 v28, 0x3a800000, v{V_PIF}\nv_mul_f32 v27, v28, v{V_H16}")
    angles(WM, WM + 16, 27, 28)
    RA = TI
    k(f"v_lshrrev_b32 v28, 2, v{V_TID}")
    k(f"v_and_b32 v27, 2, v{V_TID}\nv_cmp_ne_u32 s[48:49], 0, v27")
    k(f"v_and_b32 v27, 1, v{V_TID}\nv_cmp_ne_u32 s[52:53], 0, v27")
    k(f"v_mul_u32_u24 v27, {RO_COMP}, v27\nv_add_u32 v27, {L_RO}, v27")
    def qaddr(dst, q, base, t):
        k(f"v_lshrrev_b32 v{t}, 5, v{q}\nv_mul_u32_u24 v{dst}, 144, v{t}\nv_lshrrev_b32 v{t}, 9, v{q}\nv_lshl_add_u32 v{dst}, v{t}, 6, v{dst}")
        k(f"v_and_b32 v{t}, 31, v{q}\nv_lshl_add_u32 v{dst}, v{t}, 2, v{dst}\nv_add_u32 v{dst}, v{dst}, v{base}")
    for kk in range(4):
        k(f"v_add_u32 v26, {kk*64}, v28\nv_sub_u32 v25, 0x200, v26")
        if kk == 0:
            k("v_cmp_eq_u32 vcc, 0, v26\nv_mov_b32 v24, 0x100\nv_cndmask_b32 v25, v25, v24, vcc")
        k("v_cndmask_b32 v26, v26, v25, s[48:49]")
        k("v_sub_u32 v25, 0x400, v26\nv_and_b32 v25, 0x3ff, v25")
        k("v_cndmask_b32 v24, v25, v26, s[52:53]\nv_cndmask_b32 v25, v26, v25, s[52:53]")
        qaddr(RA + kk, 24, 27, 23)
        qaddr(RA + 4 + kk, 25, 27, 23)
    A512 = (16*36 + 16) * 4
    k(f"v_cmp_gt_u32 vcc, 2, v{V_TID}\nv_sub_u32 v24, {2*L_RO + RO_COMP + A512}, v27\nv_cndmask_b32 v{RA+4}, v{RA+4}, v24, vcc")
    k("s_mov_b64 s[88:89], vcc")
    k(f"v_and_b32 v26, 3, v{V_TID}\nv_lshlrev_b32 v26, 4, v26\nv_lshl_add_u32 v{V_SC}, v28, 14, v26")
    k(f"s_and_b32 s41, s2, 1\ns_lshl_b32 s41, s41, 8\nv_add_u32 v26, s41, v{V_TID}\nv_cmp_gt_u32 vcc, 4, v26\nv_mov_b32 v26, 0x7ffffff0\nv_cndmask_b32 v17, v{V_SC}, v26, vcc")
    k(f"s_lshl_b32 s41, s{S_V}, 12\nv_add_u32 v{V_OWN}, s41, v{V_L16}")
    k(f"s_lshl_b32 s41, s{S_C}, 10\ns_lshl_b32 s42, s{S_E}, 3\ns_add_u32 s41, s41, s42\nv_add_u32 v{V_QT}, s41, v{V_L16}")
    k(f"v_mul_u32_u24 v20, 144, v{V_PI}\nv_lshrrev_b32 v31, 4, v{V_PI}\nv_add_u32 v31, v31, v{V_H}\nv_lshl_add_u32 v20, v31, 6, v20")
    k(f"s_mul_i32 s41, s{S_V}, {RO_PLANE}\ns_add_u32 s41, s41, {L_RO}\nv_add_u32 v20, s41, v20")
    k(f"v_mov_b32 v{V_SC0}, v17")
    stamp("tabs")
    k("s_waitcnt vmcnt(7)")
    stamp("arr")
    XS = BA
    for e in range(2): mfma(XS + 16*e, ar(A_XA+8*e, 4), ar(A_ID, 4), "0")
    for e in range(2): mfma(XS + 16*e, ar(A_XA+8*e+4, 4), ar(A_ID+4, 4), vr(XS+16*e, 16))
    wprep_lds_write(WU, 'v', L_WS)
    k("s_mov_b32 s41, s92\ns_mov_b32 s42, s93\nv_mov_b32 v28, v18\nv_mov_b32 v29, v19")
    k("s_waitcnt vmcnt(0)")
    wprep_load(SRD_BR, SRD_BI, A_LB, 'a')
    k("s_waitcnt lgkmcnt(0)\ns_barrier")
    k("s_add_u32 s95, s95, 1")
    L = lab("sf")
    k(f"s_cmp_lg_u32 s{S_V}, 0\ns_cbranch_scc1 {L}")
    k(f"v_mov_b32 v30, s95\ns_lshl_b32 s41, s2, 2\nv_mov_b32 v31, {WS_FL}\ns_mov_b64 exec, 1")
    k(f"buffer_store_dword v30, v31, {sr(SRD_W,4)}, s41 offen sc1")
    k("s_mov_b64 exec, -1")
    k.label(L)
    k(f"v_readlane_b32 s52, v{XS}, 0\nv_readlane_b32 s54, v{XS+16}, 0")
    for p in range(8):
        for e in range(2):
            k(f"v_pk_add_f32 {vr(XS+16*e+2*p,2)}, {vr(XS+16*e+2*p,2)}, s[{52+2*e}:{53+2*e}] op_sel_hi:[1,0] neg_lo:[0,1] neg_hi:[0,1]")
    for e in range(2):
        x = XS + 16*e
        k(f"v_pk_add_f32 {vr(TMP+2*e,2)}, {vr(x,2)}, {vr(x+2,2)}")
        k(f"v_pk_mul_f32 {vr(TMP+4+2*e,2)}, {vr(x,2)}, {vr(x,2)}")
    for p in range(1, 8):
        for e in range(2):
            x = XS + 16*e + 2*p
            if p >= 2: k(f"v_pk_add_f32 {vr(TMP+2*e,2)}, {vr(TMP+2*e,2)}, {vr(x,2)}")
            k(f"v_pk_fma_f32 {vr(TMP+4+2*e,2)}, {vr(x,2)}, {vr(x,2)}, {vr(TMP+4+2*e,2)}")
    for i in range(4): k(f"v_add_f32 v{TMP+2*i}, v{TMP+2*i}, v{TMP+2*i+1}")
    S0, S1, Q0, Q1 = TMP, TMP+2, TMP+4, TMP+6
    k(f"v_permlane32_swap_b32 v{S0}, v{S1}\nv_permlane32_swap_b32 v{Q0}, v{Q1}")
    k(f"v_add_f32 v{S0}, v{S0}, v{S1}\nv_add_f32 v{Q0}, v{Q0}, v{Q1}")
    k(f"v_mov_b32 v{S1}, v{S0}\nv_mov_b32 v{Q1}, v{Q0}")
    k(f"v_permlane16_swap_b32 v{S0}, v{S1}\nv_permlane16_swap_b32 v{Q0}, v{Q1}")
    k(f"v_add_f32 v{S0}, v{S0}, v{S1}\nv_add_f32 v{Q0}, v{Q0}, v{Q1}")
    PV, MN, MB, VV = TMP+8, TMP+9, TMP+10, TMP+11
    fl = [f"v_mov_b32 v{PV}, s52", f"v_mov_b32 v{MN}, s54", f"v_cmp_eq_u32 vcc, 0, v{V_H}", f"s_lshl_b32 s41, s{S_V}, 2"]
    for n, sh in enumerate((8, 4, 2, 1)):
        k(fl[n])
        k(f"v_add_f32_dpp v{S0}, v{S0}, v{S0} row_ror:{sh} row_mask:0xf bank_mask:0xf")
        k(f"v_add_f32_dpp v{Q0}, v{Q0}, v{Q0} row_ror:{sh} row_mask:0xf bank_mask:0xf")
    k(f"v_cndmask_b32 v{PV}, v{MN}, v{PV}, vcc")
    k(f"v_mul_f32 v{S0}, 0x3a800000, v{S0}\nv_mul_f32 v{Q0}, 0x3a800000, v{Q0}")
    k(f"v_fma_f32 v{Q0}, -v{S0}, v{S0}, v{Q0}")
    k(f"v_add_f32 v{MN}, v{PV}, v{S0}\nv_mov_b32 v{VV}, v{Q0}")
    sd_from_var(Q0)
    rne_bf16(MB, MN)
    k(f"v_rcp_f32 v{S1}, v{Q0}")
    k(f"v_sub_f32 v{MB}, v{PV}, v{MB}")
    k(f"v_mul_f32 v{S1}, 0.5, v{S1}")
    k(f"v_mul_f32 v{MB}, v{MB}, v{S1}")
    k(f"v_mul_f32 v{MN}, 0x44800000, v{MN}")
    k(f"v_readlane_b32 s52, v{S1}, 0\nv_readlane_b32 s53, v{MB}, 0\nv_readlane_b32 s54, v{S1}, 32\nv_readlane_b32 s55, v{MB}, 32")
    k(f"s_add_u32 s41, s41, {L_SM}\nv_lshlrev_b32 v30, 4, v{V_H}\nv_add_u32 v30, s41, v30")
    k(f"v_mul_f32 v{Q0}, 0.5, v{Q0}")
    k(f"ds_write2_b32 v30, v{Q0}, v{MN} offset0:0 offset1:8\nds_write_b32 v30, v{VV} offset:64")
    for p in range(8):
        x0, x1 = XS + 2*p, XS + 16 + 2*p
        t = TMP + 4 * (p % 2)
        for e, x in enumerate((x0, x1)):
            k(f"v_pk_fma_f32 {vr(x,2)}, {vr(x,2)}, s[{52+2*e}:{53+2*e}], s[{52+2*e}:{53+2*e}] op_sel:[0,0,1] op_sel_hi:[1,0,1]")
        k(f"v_pk_add_f32 {vr(t,2)}, {vr(x0,2)}, {vr(x1,2)}\nv_pk_add_f32 {vr(t+2,2)}, {vr(x0,2)}, {vr(x1,2)} neg_lo:[0,1] neg_hi:[0,1]")
        k(f"v_cvt_pk_bf16_f32 v{OP+p}, v{t}, v{t+1}\nv_cvt_pk_bf16_f32 v{OP+8+p}, v{t+2}, v{t+3}")
    stamp("ln")
    gA = wprep_gather(WS_WA, TF, TF + 16, L_WS, 42, 28)
    dft(DA, OP, A_F0, True, False, False, fill=gA, per=7)
    cmul_pack(DA, WM, OP, False)
    dft(XS, OP, A_F0, True, False, False, fill=gA, per=6)
    for x in gA: k(x)
    wprep_special(WS_WA, WU + 18)
    for comp in range(2):
        for gq in range(4):
            k(f"ds_write_b128 v20, {vr(XS+16*comp+4*gq,4)} offset:{comp*RO_COMP+16*gq}")
    L, L2 = lab("pf"), lab("pfe")
    k(f"s_cmp_lg_u32 s{S_V}, 3\ns_cbranch_scc1 {L2}")
    k(f"s_mov_b32 s46, 0\ns_mov_b32 s47, {WS_FL}")
    k.label(L)
    k(ld4(24, V_L16, "s47"))
    k("s_waitcnt vmcnt(0)")
    k("v_xor_b32 v24, s95, v24\nv_xor_b32 v25, s95, v25\nv_xor_b32 v26, s95, v26\nv_xor_b32 v27, s95, v27\nv_or3_b32 v24, v24, v25, v26\nv_or_b32 v24, v24, v27")
    k("v_cmp_ne_u32 vcc, 0, v24")
    k(f"s_add_u32 s46, s46, 1\ns_cmp_ge_u32 s46, {SPIN_MAX}\ns_cbranch_scc1 L_fail")
    k(f"s_cbranch_vccz {L2}\ns_sleep 4\ns_branch {L}")
    k.label(L2)
    k(f"v_add_u32 v30, {L_SM}, v{V_T16}")
    k(f"s_lshl_b32 s41, s2, 6\ns_add_u32 s41, s41, {WS_E0}")
    k("s_waitcnt vmcnt(0) lgkmcnt(0)")
    stamp("f2")
    k("s_barrier")
    U = RO_PLANE // 256
    for kk in range(4):
        b = DA + 8*kk
        k(f"ds_read2st64_b32 {vr(b,2)}, v{RA+kk} offset0:0 offset1:{U}")
        k(f"ds_read2st64_b32 {vr(b+2,2)}, v{RA+kk} offset0:{2*U} offset1:{3*U}")
        k(f"ds_read2st64_b32 {vr(b+4,2)}, v{RA+4+kk} offset0:0 offset1:{U}")
        k(f"ds_read2st64_b32 {vr(b+6,2)}, v{RA+4+kk} offset0:{2*U} offset1:{3*U}")
    for kk in range(4):
        b = DA + 8*kk; o = OP + 4*kk
        k(f"s_waitcnt lgkmcnt({4*(3-kk)})")
        for hh in range(2):
            k(f"v_pk_add_f32 {vr(TMP+2*hh,2)}, {vr(b+2*hh,2)}, {vr(b+4+2*hh,2)}")
            k(f"v_pk_add_f32 {vr(TMP+4+2*hh,2)}, {vr(b+2*hh,2)}, {vr(b+4+2*hh,2)} neg_lo:[0,1] neg_hi:[0,1]")
        if kk == 0:
            k("s_mov_b64 exec, s[88:89]")
            for hh in range(2):
                k(f"v_pk_add_f32 {vr(TMP+2*hh,2)}, {vr(b+2*hh,2)}, {vr(b+2*hh,2)}")
                k(f"v_pk_add_f32 {vr(TMP+4+2*hh,2)}, {vr(b+4+2*hh,2)}, {vr(b+4+2*hh,2)}")
            k("s_mov_b64 exec, -1")
        for i in range(4): k(f"v_cvt_pk_bf16_f32 v{o+i}, v{TMP+2*i}, v{TMP+2*i+1}")
        k(f"v_min_u32 v{o+3}, -2, v{o+3}")
        k(f"s_add_u32 s47, s41, {kk*64*16384}")
        k(f"buffer_store_dwordx4 {vr(o,4)}, v{V_SC}, {sr(SRD_W,4)}, s47 offen sc1")
    L = lab("st")
    k(f"s_cmp_lg_u32 s{S_V}, 0\ns_cbranch_scc1 {L}")
    k(f"ds_read_b128 {vr(TMP+8,4)}, v30")
    k("s_and_b32 s42, s2, 3\ns_lshr_b32 s43, s2, 4\ns_and_b32 s43, s43, 1\ns_lshl_b32 s43, s43, 2\ns_or_b32 s42, s42, s43")
    k("s_lshr_b32 s43, s2, 2\ns_and_b32 s43, s43, 3\ns_lshl_b32 s43, s43, 3\ns_or_b32 s42, s42, s43")
    k("s_lshr_b32 s43, s2, 7\ns_lshl_b32 s43, s43, 5\ns_add_u32 s42, s42, s43\ns_lshl_b32 s42, s42, 4")
    k(f"s_lshr_b32 s43, s2, 5\ns_and_b32 s43, s43, 3\ns_lshl_b32 s43, s43, 10\ns_add_u32 s42, s42, s43\ns_add_u32 s42, s42, {WS_S0}")
    k(f"v_lshlrev_b32 v30, 12, v{V_TID}")
    k("s_waitcnt lgkmcnt(0)")
    for i in range(4): k(f"v_min_u32 v{TMP+8+i}, -2, v{TMP+8+i}")
    k("s_mov_b64 exec, 63")
    k(f"buffer_store_dwordx4 {vr(TMP+8,4)}, v30, {sr(SRD_W,4)}, s42 offen sc1")
    k("s_mov_b64 exec, -1")
    k.label(L)
    stamp("e0_st")
    wprep_lds_write(A_LB, 'a', L_WS2)
    k(f"v_cvt_f32_u32 v26, s{S_E}\nv_fma_f32 v25, 2.0, v{V_PIF}, v26")
    k(f"v_mul_f32 v28, 0x3c800000, v25\nv_mul_f32 v27, v28, v{V_H16}")
    angles(DA, DA + 16, 27, 28)
    family(A_SA, DA, DA + 16)
    k(f"v_mul_f32 v28, 0x3a000000, v25\nv_mul_f32 v27, v28, v{V_H16}")
    angles(TF, TF + 16, 27, 28)
    k(f"v_fma_f32 v25, 2.0, v{V_H16}, v26\nv_mul_f32 v25, v25, v{V_PIF}")
    k(f"v_mul_f32 v28, 0x3d000000, v{V_PIF}\nv_mul_f32 v27, 0x3c800000, v25")
    angles(DA, DA + 16, 27, 28)
    family(A_IB, DA, DA + 16)
    k(f"v_mul_f32 v28, 0x3a800000, v{V_PIF}\nv_mul_f32 v27, 0x3a000000, v25")
    k("s_mov_b32 s62, 0x3a000000")
    angles(TI, TI + 16, 27, 28, scale="s[62:63]")
    k(f"v_mov_b32 v{V_SC0}, v17")
    k(f"v_bfe_u32 v28, v{V_TID}, 2, 5")
    pinv(27, 28, 26)
    k(f"v_lshlrev_b32 v27, 4, v27\nv_lshrrev_b32 v26, 7, v{V_TID}\nv_lshl_add_u32 v27, v26, 3, v27")
    k(f"v_and_b32 v26, 3, v{V_TID}\nv_lshl_add_u32 v18, v26, 12, v27\nv_add_u32 v18, {L_OPS}, v18")
    k(f"v_xor_b32 v26, 1, v26\nv_lshl_add_u32 v19, v26, 12, v27\nv_add_u32 v19, {L_OPS+2048}, v19")
    k(f"s_add_u32 s42, s58, {WS_E0}")
    set4(90, "s42")
    k(f"s_lshl_b32 s61, s{S_V}, 10")
    k(f"s_add_u32 s52, s61, {WS_S0}\ns_add_u32 s53, s52, 4096")
    k(f"s_lshr_b32 s54, s59, 8\ns_add_u32 s54, s54, {WS_V0}\nv_and_b32 v20, 15, v{V_L}\nv_lshlrev_b32 v20, 2, v20")
    k(f"s_lshl_b32 s42, s{S_V}, 12\ns_add_u32 s63, s58, s42\ns_add_u32 s94, s63, {WS_WA}")
    k("s_waitcnt vmcnt(0) lgkmcnt(0)\ns_barrier")
    stamp("tabc")
    e0_loads = blk_loads(DA, 90) + [ld4(RS, V_L16, "s52"), ld4(RS+4, V_L16, "s53"), f"buffer_load_dword v23, v20, {sr(SRD_W,4)}, s54 offen sc1"]
    e0_words = [DA+3, DA+7, DA+11, DA+15, RS+3, RS+7, 23]
    for x in e0_loads: k(x)
    for x in wprep_gather(WS_WB, WM, WM + 16, L_WS2, 42, 28): k(x)
    k("s_waitcnt vmcnt(4)")
    Lok = lab("e0ok")
    k(f"v_max3_u32 v31, v{e0_words[0]}, v{e0_words[1]}, v{e0_words[2]}\nv_max3_u32 v31, v31, v{e0_words[3]}, v{e0_words[4]}\nv_max3_u32 v31, v31, v{e0_words[5]}, v{e0_words[6]}")
    k(f"v_cmp_eq_u32 vcc, -1, v31\ns_nop 1\ns_cbranch_vccz {Lok}\ns_mov_b64 exec, vcc")
    poll(e0_loads, e0_words)
    k.label(Lok)
    stamp("e0_ok")
    for kk in range(4):
        off = (kk & 1) * 1024 + (kk >> 1) * 512
        k(f"ds_write_b64 v18, {vr(DA+4*kk,2)} offset:{off}")
        k(f"ds_write_b64 v19, {vr(DA+4*kk+2,2)} offset:{off}")
    wprep_special(WS_WB, WU, sp_a=A_LB + 18)
    if checkpoint("r0_done"): return k
    k("s_waitcnt lgkmcnt(0)\ns_barrier")
    for i in range(4): k(ld4(WU+16+4*i, V_L16, "s94", 1024*i))
    deferred = []
    sp_pw = []
    SUB = "neg_lo:[0,1] neg_hi:[0,1]"
    def psum(X, dst, init):
        Ls, Le = lab("ps"), lab("pe")
        for e in range(2):
            for hh in range(2):
                d = vr(dst + 4*e + 2*hh, 2)
                xr, xi = vr(X + 16 + 8*e + 2*hh, 2), vr(X + 16 + 8*e + 4 + 2*hh, 2)
                k(f"v_pk_fma_f32 {d}, {xr}, {xr}, {vr(init+4*e+2*hh,2)} neg_lo:[0,0,1] neg_hi:[0,0,1]")
                k(f"v_pk_fma_f32 {d}, {xi}, {xi}, {d}")
        k(f"s_cmp_eq_u32 s2, 0\ns_cbranch_scc1 {Ls}")
        for e in range(2):
            for hh in range(2):
                d = vr(dst + 4*e + 2*hh, 2)
                xr, xi = vr(X + 8*e + 2*hh, 2), vr(X + 8*e + 4 + 2*hh, 2)
                k(f"v_pk_fma_f32 {d}, {xr}, {xr}, {d}\nv_pk_fma_f32 {d}, {xi}, {xi}, {d}")
        k.label(Le)
        return Ls, Le, X, dst
    for lay in range(4):
        k(f"s_mov_b32 s{S_LAY}, {lay}")
        for i in (0, 2, 1, 3):
            k(f"ds_read_b128 {vr(OP+4*i,4)}, v{V_OWN} offset:{L_OPS+1024*i}")
        f1 = f2 = f3 = None
        if lay == 0:
            Q = WM
            for c in range(2):
                for w in range(2):
                    for comp in range(2):
                        k(f"ds_read_b64 {vr(Q+8*c+4*w+2*comp,2)}, v{V_QT} offset:{L_OPS+c*8192+w*4096+comp*2048}")
            xi = []
            for c in range(2):
                for comp in range(2):
                    for hh in range(2):
                        a, b = Q + 8*c + 2*comp + hh, Q + 8*c + 4 + 2*comp + hh
                        x1, x2 = BA + c*16 + comp*4 + 2*hh, BA + c*16 + 8 + comp*4 + 2*hh
                        xi += lines(f"v_lshlrev_b32 v24, 16, v{a}\nv_and_b32 v25, 0xffff0000, v{a}\nv_lshlrev_b32 v26, 16, v{b}\nv_and_b32 v27, 0xffff0000, v{b}")
                        xi += lines(f"v_add_f32 v{x1}, v24, v26\nv_add_f32 v{x1+1}, v25, v27\nv_sub_f32 v{x2}, v24, v26\nv_sub_f32 v{x2+1}, v25, v27")
                        xi += lines(f"v_mul_f32 v{x1}, v{x1}, v{RS+2*hh}\nv_mul_f32 v{x1+1}, v{x1+1}, v{RS+2*hh+1}\nv_mul_f32 v{x2}, v{x2}, v{RS+4+2*hh}\nv_mul_f32 v{x2+1}, v{x2+1}, v{RS+4+2*hh+1}")
            k("s_cmp_eq_u32 s2, 0\ns_cselect_b32 s52, 0, 1.0\ns_cselect_b32 s53, 0.5, 1.0")
            for e in range(2):
                for i in range(4):
                    d = P0 + 4*e + i
                    xi += lines(f"v_mul_f32 v{d}, v{BA+16+8*e+i}, v{BA+16+8*e+i}\nv_fmac_f32 v{d}, v{BA+16+8*e+4+i}, v{BA+16+8*e+4+i}")
                    xi += lines(f"v_mul_f32 v24, s52, v{BA+8*e+i}\nv_fmac_f32 v{d}, v24, v{BA+8*e+i}\nv_mul_f32 v25, s53, v{BA+8*e+4+i}\nv_fmac_f32 v{d}, v25, v{BA+8*e+4+i}")
            k("s_waitcnt lgkmcnt(10)")
            dft(DA, OP, A_SA, True, False, False, fill=None, midwait="s_waitcnt lgkmcnt(8)")
            k("s_waitcnt lgkmcnt(0)")
            pre = [xi.pop(0) for _ in range(12)]
            for x in pre: k(x)
            cmul_pack(DA, TF, OP, False)
            dft(DA, OP, A_F0, False, False, False, fill=xi, per=6)
            k("s_waitcnt vmcnt(0)")
            for r in range(16): k(f"v_accvgpr_write_b32 a{A_WA+r}, v{WU+16+r}")
            w_unpack_v(WU+16, WU, WU+16)
            L = lab("wma")
            k(f"s_cmp_eq_u32 s{S_SP}, 0\ns_cbranch_scc1 {L}")
            for x in list(xi[:max(0, 96 - 12 - 48)]): k(x)
            sp_done = max(0, 96 - 12 - 48)
            k(f"s_add_u32 s42, s94, {256*16384}")
            for i in range(4): k(ld4(WM+16+4*i, V_L16, "s42", 1024*i))
            k("s_waitcnt vmcnt(0)")
            for r in range(16): k(f"v_accvgpr_write_b32 a{A_WMA+r}, v{WM+16+r}")
            w_unpack_v(WM+16, WM, WM+16)
            k(f"s_branch {L}_b")
            k.label(L)
            for _ in range(sp_done): k(xi.pop(0))
            k.label(f"{L}_b")
            f3 = xi
        else:
            k("s_waitcnt lgkmcnt(2)")
            dft(DA, OP, A_SA, True, False, False, midwait="s_waitcnt lgkmcnt(0)")
            cmul_pack(DA, TF, OP, False)
            dft(DA, OP, A_F0, False, False, False)
        stamp("st2", True)
        Ls, Le = lab("psp"), lab("pse")
        k(f"s_cmp_lg_u32 s{S_SP}, 0\ns_cbranch_scc1 {Ls}")
        cmul_pack(DA, WU, OP, True)
        k.label(Le)
        sp_pw.append((Ls, Le))
        stamp("pw", True)
        li = []
        if lay < 2:
            li += [f"v_mov_b32 v{28+i}, -1" for i in range(4)]
            for base, sreg in ((WS_H1 + (lay+1)*0x200000, "s60"), (WS_E1 + lay*8192, "s58")):
                for i in range(2):
                    li += lines(f"s_add_u32 s47, {sreg}, {base + 4096*i}\nbuffer_store_dwordx4 v[28:31], v{V_T16}, {sr(SRD_W,4)}, s47 offen sc1")
        fl = (f3 or []) + li
        dft(DA, OP, A_F0, True, True, False, fill=fl, per=6)
        for x in fl: k(x)
        if lay == 0:
            L = lab("m0")
            k(f"s_cmp_lg_u32 s2, 0\ns_cbranch_scc1 {L}")
            k(f"s_add_u32 s44, s61, {WS_M0}\ns_add_u32 s45, s44, 4096")
            poll([ld4(BA, V_L16, "s44"), ld4(BA+8, V_L16, "s45")], [BA+3, BA+11])
            k.label(L)
            for r in range(12): k(f"v_accvgpr_write_b32 a{A_XH+r}, v{BA+r}")
        cmul_pack(DA, TI, OP, True)
        if lay == 0:
            for r in range(12, 32): k(f"v_accvgpr_write_b32 a{A_XH+r}, v{BA+r}")
        xf = [f"v_accvgpr_read_b32 v{DA+r}, a{A_XH+r}" for r in range(32)] if lay < 3 else []
        xf += lines(f"s_lshl_b32 s41, s{S_V}, 13\nv_add_u32 v30, s41, v{V_L16}\nv_add_u32 v29, s61, v{V_L16}")
        if lay < 3:
            xf += lines(f"s_lshl_b32 s42, s2, 6\ns_add_u32 s41, s42, {WS_H1 + lay*0x200000}")
        else:
            xf += lines(f"v_lshrrev_b32 v28, 2, v{V_TID}\nv_and_b32 v27, 3, v28\nv_bfe_u32 v26, v28, 3, 2\nv_lshl_or_b32 v27, v26, 2, v27\nv_bfe_u32 v26, v28, 2, 1\nv_lshl_or_b32 v27, v26, 4, v27")
            xf += lines(f"v_lshrrev_b32 v26, 5, v28\nv_lshl_add_u32 v27, v26, 7, v27\nv_lshlrev_b32 v27, 14, v27\nv_and_b32 v26, 3, v{V_TID}\nv_lshl_add_u32 v27, v26, 4, v27")
            xf += lines(f"v_lshlrev_b32 v29, 2, v{V_TID}\ns_lshl_b32 s41, s2, 6\ns_add_u32 s41, s41, {WS_E1}")
        dft(BA, OP, A_IB, False, True, lay > 0, fill=xf, per=5)
        for x in xf: k(x)
        for comp in range(2):
            for gq in range(4):
                k(f"ds_write_b128 v30, {vr(BA+16*comp+4*gq,4)} offset:{L_AX+comp*4096+gq*1024}")
        stamp("i2", True)
        if lay == 3: break
        k("s_waitcnt lgkmcnt(0)\ns_barrier")
        for c in range(2):
            for comp in range(2):
                for w in range(2):
                    k(f"ds_read_b128 {vr(WU+c*16+w*8+comp*4,4)}, v29 offset:{L_AX+(2*c+w)*8192+comp*4096}")
        n = 0
        for c in range(2):
            for comp in range(2):
                k(f"s_waitcnt lgkmcnt({6-2*n})"); n += 1
                for hh in range(2):
                    b0, b1 = vr(WU + c*16 + comp*4 + 2*hh, 2), vr(WU + c*16 + 8 + comp*4 + 2*hh, 2)
                    x1, x2 = vr(DA + c*16 + comp*4 + 2*hh, 2), vr(DA + c*16 + 8 + comp*4 + 2*hh, 2)
                    k(f"v_pk_add_f32 {x1}, {x1}, {b0}\nv_pk_add_f32 {x2}, {x2}, {b0}")
                    k(f"v_pk_add_f32 {x1}, {x1}, {b1}\nv_pk_add_f32 {x2}, {x2}, {b1} {SUB}")
        if stop == f"layer{lay}":
            dbg_dump(list(range(DA, DA+32))); flush_deferred(k, deferred); special_pw(k, sp_pw, NEG2); return k
        deferred.append(psum(DA, TMP, P0))
        if lay < 2: k("s_waitcnt vmcnt(0)")
        for e in range(2):
            k(f"v_min_u32 v{TMP+4*e+3}, -2, v{TMP+4*e+3}")
            k(f"s_add_u32 s47, s41, {e*64*16384}")
            k(f"buffer_store_dwordx4 {vr(TMP+4*e,4)}, v{V_SC}, {sr(SRD_W,4)}, s47 offen sc1")
        stamp("h1_st", True)
        L1 = lab("w1")
        k(f"s_cmp_lg_u32 s2, 0\ns_cbranch_scc1 {L1}")
        k("s_mov_b32 s52, 0x3a800000\ns_mov_b32 s53, 0xc4800000")
        for e in range(2):
            for hh in range(2):
                x = vr(DA + 8*e + 2*hh, 2)
                k(f"v_pk_mul_f32 {vr(OP,2)}, {x}, s[52:53] op_sel_hi:[1,0]")
                k(f"v_cvt_pk_bf16_f32 v{OP+1}, v{OP}, v{OP+1}")
                k(f"v_lshlrev_b32 v{OP}, 16, v{OP+1}\nv_and_b32 v{OP+1}, 0xffff0000, v{OP+1}")
                k(f"v_pk_fma_f32 {x}, {vr(OP,2)}, s[52:53], {x} op_sel:[0,1,0] op_sel_hi:[1,1,1]")
        if lay > 0:
            w_unpack(A_WMA if lay == 1 else A_WMB, WM, WM + 16)
        k.label(L1)
        if lay > 0:
            w_unpack(A_WA if lay == 1 else A_WB, WU, WU + 16)
        k(f"s_add_u32 s42, s59, {WS_H1 + lay*0x200000}")
        set4(90, "s42")
        k(f"v_and_b32 v30, 3, v{V_L}\nv_lshlrev_b32 v30, 2, v30\nv_bfe_u32 v29, v{V_L}, 4, 1\nv_lshl_add_u32 v30, v29, 1, v30\nv_add_u32 v30, v30, v{V_H}")
        k(f"v_lshlrev_b32 v30, 4, v30\ns_lshl_b32 s41, s{S_V}, 2\ns_add_u32 s41, s41, {L_SM+256}\nv_add_u32 v30, s41, v30")
        k(f"v_and_b32 v28, 15, v{V_L}\nv_lshlrev_b32 v29, 4, v28\nv_lshrrev_b32 v27, 4, v{V_L}\nv_lshlrev_b32 v27, 13, v27\nv_lshl_add_u32 v28, v28, 2, v27")
        k(f"s_lshr_b32 s42, s2, 7\ns_lshl_b32 s42, s42, 15\ns_lshr_b32 s41, s59, 8\ns_add_u32 s41, s41, s42\ns_add_u32 s41, s41, {WS_H2 + lay*65536}")
        k(f"s_and_b32 s43, s2, 7\ns_lshl_b32 s43, s43, 13\ns_add_u32 s52, s43, s61\ns_add_u32 s52, s52, {WS_H2 + lay*65536}\ns_add_u32 s53, s52, 4096")
        k("v_mov_b32 v27, 0x36000000")
        k("s_waitcnt vmcnt(0)")
        stamp("wnext", True)
        poll(blk_loads(OP, 90), [OP+3, OP+7, OP+11, OP+15])
        stamp("h1_ok", True)
        for hh in range(2):
            k(f"v_pk_add_f32 {vr(OP+2*hh,2)}, {vr(OP+2*hh,2)}, {vr(OP+4+2*hh,2)}")
            k(f"v_pk_add_f32 {vr(OP+8+2*hh,2)}, {vr(OP+8+2*hh,2)}, {vr(OP+12+2*hh,2)}")
        for hh in range(2):
            k(f"v_pk_add_f32 {vr(OP+2*hh,2)}, {vr(OP+2*hh,2)}, {vr(OP+8+2*hh,2)}")
        k(f"v_permlane32_swap_b32 v{OP}, v{OP+1}\nv_permlane32_swap_b32 v{OP+2}, v{OP+3}")
        k(f"v_add_f32 v{OP}, v{OP}, v{OP+1}\nv_add_f32 v{OP+2}, v{OP+2}, v{OP+3}")
        k(f"v_permlane16_swap_b32 v{OP}, v{OP+2}")
        k(f"v_add_f32 v{OP}, v{OP}, v{OP+2}")
        k(f"v_add_f32_dpp v{OP}, v{OP}, v{OP} row_ror:8 row_mask:0xf bank_mask:0xf")
        k(f"v_add_f32_dpp v{OP}, v{OP}, v{OP} row_ror:4 row_mask:0xf bank_mask:0xf")
        k(f"ds_write_b32 v30, v{OP}")
        k("s_waitcnt lgkmcnt(0)\ns_barrier")
        Lr2 = lab("red2")
        k(f"s_cmp_lg_u32 s{S_V}, 3\ns_cbranch_scc1 {Lr2}")
        k(f"ds_read_b128 {vr(OP,4)}, v29 offset:{L_SM+256}")
        k("s_waitcnt lgkmcnt(0)")
        k(f"v_pk_add_f32 {vr(OP,2)}, {vr(OP,2)}, {vr(OP+2,2)}\nv_add_f32 v{OP}, v{OP}, v{OP+1}")
        k(f"v_fma_f32 v{OP}, v{OP}, v27, v23")
        sd_from_var(OP)
        k(f"v_rcp_f32 v{OP}, v{OP}")
        k(f"v_min_u32 v{OP}, -2, v{OP}")
        k(f"buffer_store_dword v{OP}, v28, {sr(SRD_W,4)}, s41 offen sc1")
        k.label(Lr2)
        stamp("red", True)
        if lay == 0:
            k(f"s_add_u32 s42, s63, {WS_WB}\ns_add_u32 s43, s42, {256*16384}")
            for i in range(4): k(ld4(WU+16+4*i, V_L16, "s42", 1024*i))
            Lx = lab("wbx")
            k(f"s_cmp_eq_u32 s{S_SP}, 0\ns_cbranch_scc1 {Lx}")
            for i in range(4): k(ld4(WM+16+4*i, V_L16, "s43", 1024*i))
            k("s_waitcnt vmcnt(0)")
            for r in range(16): k(f"v_accvgpr_write_b32 a{A_WMB+r}, v{WM+16+r}")
            w_unpack_v(WM+16, WM, WM+16)
            k.label(Lx)
            k("s_waitcnt vmcnt(0)")
            for r in range(16): k(f"v_accvgpr_write_b32 a{A_WB+r}, v{WU+16+r}")
            w_unpack_v(WU+16, WU, WU+16)
        k("s_waitcnt vmcnt(0)\ns_barrier")
        poll([ld4(RS, V_L16, "s52"), ld4(RS+4, V_L16, "s53")], [RS+j for j in range(8)])
        stamp("h2_ok", True)
        for c in range(2):
            for comp in range(2):
                o = OP + 8*c + 4*comp
                for hh in range(2):
                    x1, x2 = vr(DA + c*16 + comp*4 + 2*hh, 2), vr(DA + c*16 + 8 + comp*4 + 2*hh, 2)
                    t = TMP + 4*hh
                    k(f"v_pk_mul_f32 {x1}, {x1}, {vr(RS+2*hh,2)}")
                    k(f"v_pk_fma_f32 {vr(t,2)}, {x2}, {vr(RS+4+2*hh,2)}, {x1}")
                    k(f"v_pk_fma_f32 {vr(t+2,2)}, {x2}, {vr(RS+4+2*hh,2)}, {x1} {NEG2}")
                    k(f"v_cvt_pk_bf16_f32 v{o+hh}, v{t}, v{t+1}\nv_cvt_pk_bf16_f32 v{o+2+hh}, v{t+2}, v{t+3}")
                for w in range(2):
                    k(f"ds_write_b64 v{V_QT}, {vr(o+2*w,2)} offset:{L_OPS+c*8192+w*4096+comp*2048}")
        k("s_waitcnt lgkmcnt(0)\ns_barrier")
    k("s_waitcnt lgkmcnt(0)\ns_barrier")
    def fo(v, comp, kk): return (L_AX + v*8192 + comp*4096 + kk*1024) // 256
    for kk in range(4):
        b = DA + 8*kk
        k(f"ds_read2st64_b32 {vr(b,2)}, v29 offset0:{fo(0,0,kk)} offset1:{fo(2,0,kk)}")
        k(f"ds_read2st64_b32 {vr(b+2,2)}, v29 offset0:{fo(1,0,kk)} offset1:{fo(3,0,kk)}")
        k(f"ds_read2st64_b32 {vr(b+4,2)}, v29 offset0:{fo(0,1,kk)} offset1:{fo(2,1,kk)}")
        k(f"ds_read2st64_b32 {vr(b+6,2)}, v29 offset0:{fo(1,1,kk)} offset1:{fo(3,1,kk)}")
    k("s_cmp_eq_u32 s2, 0\ns_cselect_b64 s[44:45], -1, 0")
    for kk in range(4):
        b = DA + 8*kk; o = OP + 4*kk; y = TMP; t = TMP + 8
        k(f"s_waitcnt lgkmcnt({4*(3-kk)})")
        k(f"v_pk_add_f32 {vr(y,2)}, {vr(b,2)}, {vr(b+2,2)}")
        k(f"v_pk_add_f32 {vr(y+2,2)}, {vr(b,2)}, {vr(b+2,2)} {SUB}")
        k(f"v_pk_add_f32 {vr(y+4,2)}, {vr(b+4,2)}, {vr(b+6,2)}")
        k(f"v_pk_add_f32 {vr(y+6,2)}, {vr(b+4,2)}, {vr(b+6,2)} {SUB}")
        k(f"v_pk_add_f32 {vr(t,2)}, {vr(y,2)}, {vr(y+6,2)} {SUB}")
        k(f"v_pk_add_f32 {vr(t+2,2)}, {vr(y+4,2)}, {vr(y+2,2)}")
        k(f"v_pk_add_f32 {vr(t+4,2)}, {vr(y,2)}, {vr(y+6,2)}")
        k(f"v_pk_add_f32 {vr(t+6,2)}, {vr(y+2,2)}, {vr(y+4,2)} {SUB}")
        k(f"v_cvt_pk_bf16_f32 v{o}, v{t}, v{t+2}")
        k(f"v_cvt_pk_bf16_f32 v{o+1}, v{t+5}, v{t+7}")
        k(f"v_cvt_pk_bf16_f32 v{o+2}, v{t+1}, v{t+3}")
        k(f"v_cvt_pk_bf16_f32 v{o+3}, v{t+4}, v{t+6}")
        k("s_mov_b64 exec, s[44:45]")
        k(f"v_cvt_pk_bf16_f32 v{o}, v{y}, v{y+2}")
        k(f"v_cvt_pk_bf16_f32 v{o+1}, v{y+4}, v{y+6}")
        k(f"v_cvt_pk_bf16_f32 v{o+3}, v{t+5}, v{t+7}")
        k("s_mov_b64 exec, -1")
        k(f"v_min_u32 v{o+3}, -2, v{o+3}")
        k(f"s_add_u32 s47, s41, {kk*32*16384}")
        k(f"buffer_store_dwordx4 {vr(o,4)}, v27, {sr(SRD_W,4)}, s47 offen sc1")
    stamp("e1_st")
    L = lab("ep")
    k(f"s_or_b32 s42, s2, s{S_V}\ns_cmp_lg_u32 s42, 0\ns_cbranch_scc1 {L}")
    k(f"v_mov_b32 v30, s95\nv_mov_b32 v31, {WS_EP}\ns_mov_b64 exec, 1")
    k(f"buffer_store_dword v30, v31, {sr(SRD_W,4)}, 0 offen sc1")
    k("s_mov_b64 exec, -1")
    k.label(L)
    k(f"v_mul_f32 v28, 0x3d000000, v{V_PIF}\nv_mul_f32 v27, v28, v{V_H16}\nv_mul_f32 v27, 0.5, v27")
    k("s_mov_b32 s62, 0x3a800000")
    angles(DA, DA + 16, 27, 28, n=8, scale="s[62:63]")
    k(f"v_and_b32 v26, 1, v{V_PI}\nv_mul_u32_u24 v26, 0x8000, v26\nv_lshl_or_b32 v26, v26, 16, v26")
    for n in range(8):
        u, e2 = n >> 1, n & 1
        c, s_ = DA + n, DA + 16 + n
        t = TMP + 4 * (n % 2)
        k(f"v_cvt_pk_bf16_f32 v{t}, v{c}, -v{s_}\nv_cvt_pk_bf16_f32 v{t+1}, v{s_}, v{c}")
        k(f"v_xor_b32 v{t+2}, v26, v{t}\nv_xor_b32 v{t+3}, v26, v{t+1}")
        k(f"v_accvgpr_write_b32 a{A_R4+4*u+2*e2}, v{t}\nv_accvgpr_write_b32 a{A_R4+16+4*u+2*e2}, v{t+1}")
        k(f"v_accvgpr_write_b32 a{A_R4+4*u+2*e2+1}, v{t+2}\nv_accvgpr_write_b32 a{A_R4+16+4*u+2*e2+1}, v{t+3}")
    k(f"v_mul_f32 v28, 0x3a800000, v{V_PIF}\nv_mul_f32 v27, v28, v{V_H16}")
    angles(TF, TF + 16, 27, 28)
    for e in range(2): mfma(BA + 16*e, ar(A_ID, 4), ar(A_XA+8*e, 4), "0")
    for e in range(2): mfma(BA + 16*e, ar(A_ID+4, 4), ar(A_XA+8*e+4, 4), vr(BA+16*e, 16))
    k(f"v_lshrrev_b32 v28, 2, v{V_TID}\nv_and_b32 v29, 3, v{V_TID}\nv_lshlrev_b32 v29, 12, v29\nv_add_u32 v29, {L_RQ}, v29")
    def rqaddr(dst, j):
        k(f"v_and_b32 v25, 31, v{j}")
        pinv(24, 25, 23)
        k(f"v_lshl_add_u32 v{dst}, v24, 4, v29")
        k(f"v_bfe_u32 v24, v{j}, 5, 1\nv_lshl_add_u32 v{dst}, v24, 3, v{dst}")
        k(f"v_bfe_u32 v24, v{j}, 6, 2\nv_lshl_add_u32 v{dst}, v24, 10, v{dst}")
        k(f"v_bfe_u32 v24, v{j}, 8, 1\nv_lshl_add_u32 v{dst}, v24, 9, v{dst}")
    rqaddr(P0, 28)
    for kk in range(4):
        k(f"v_add_u32 v26, {kk*64}, v28\nv_sub_u32 v27, 0x200, v26")
        if kk == 0:
            k("v_cmp_eq_u32 vcc, 0, v26\nv_mov_b32 v24, 0x100\nv_cndmask_b32 v27, v27, v24, vcc")
        rqaddr(P0 + 1 + kk, 27)
    k(f"s_add_u32 s42, s58, {WS_E1}")
    set4(90, "s42")
    k("s_waitcnt vmcnt(0)")
    stamp("tab4")
    poll(blk_loads(DA, 90), [DA+3, DA+7, DA+11, DA+15])
    stamp("e1_ok")
    for kk in range(4):
        k(f"ds_write_b64 v{P0}, {vr(DA+4*kk,2)} offset:{kk*1024}")
        k(f"ds_write_b64 v{P0+1+kk}, {vr(DA+4*kk+2,2)}")
    k("s_waitcnt lgkmcnt(0)\ns_barrier")
    for u in range(4):
        k(f"ds_read_b128 {vr(OP+4*u,4)}, v{V_OWN} offset:{L_RQ+1024*u}")
    for u in range(4):
        k(f"s_waitcnt lgkmcnt({3-u})")
        mfma(DA, vr(OP+4*u, 4), ar(A_R4+4*u, 4), "0" if u == 0 else vr(DA, 16))
        mfma(DA+16, vr(OP+4*u, 4), ar(A_R4+16+4*u, 4), "0" if u == 0 else vr(DA+16, 16))
    cmul_pack(DA, TF, OP, True)
    dft(BA, OP, A_F0, True, True, True)
    for e in range(2):
        for p in range(8):
            k(f"v_cvt_pk_bf16_f32 v{OP+8*e+p}, v{BA+16*e+2*p}, v{BA+16*e+2*p+1}")
        for t in range(2):
            k(f"buffer_store_dwordx4 {vr(OP+8*e+4*t,4)}, v{V_XO}, {sr(SRD_O,4)}, s{50+e} offen offset:{16*t}")
    stamp("out_st")
    if prof:
        k("s_waitcnt vmcnt(0)")
        stamp("end")
        dbg_dump([22])
    k("s_endpgm")
    flush_deferred(k, deferred)
    special_pw(k, sp_pw, NEG2)
    return k

def special_pw(k, sp_pw, NEG2):
    for Ls, Le in sp_pw: k.label(Ls)
    k(f"s_mul_i32 s41, s{S_E}, {2*REV_C}\ns_add_u32 s41, s41, {L_REV}")
    k(f"v_mul_u32_u24 v30, {REV_ROW}, v{V_PI}\nv_lshl_add_u32 v30, v{V_H}, 6, v30\nv_add_u32 v30, s41, v30")
    k(f"v_add_u32 v29, s{S_E}, v{V_PI}\nv_cmp_eq_u32 vcc, 0, v29\nv_sub_u32 v29, 32, v29\nv_and_b32 v29, 31, v29\nv_mul_u32_u24 v29, {REV_ROW}, v29")
    k(f"v_xor_b32 v28, 1, v{V_H}\nv_lshl_add_u32 v29, v28, 6, v29\nv_cndmask_b32 v28, 0, 4, vcc\nv_add3_u32 v29, v29, v28, s41")
    k("s_nop 3")
    for comp in range(2):
        for g in range(4):
            k(f"ds_write_b128 v30, {vr(DA+16*comp+4*g,4)} offset:{comp*REV_C+16*g}")
    k("s_mov_b64 exec, 1")
    for comp in range(2):
        k(f"ds_write_b32 v30, v{DA+16*comp} offset:{comp*REV_C+128}")
    k("s_mov_b64 exec, -1")
    for g in range(4):
        k(f"ds_read_b128 {vr(OP+4*g,4)}, v29 offset:{16*g}")
    for p in range(8):
        re, im = vr(DA+2*p, 2), vr(DA+16+2*p, 2)
        c, s = vr(WU+2*p, 2), vr(WU+16+2*p, 2)
        t = TMP + 4 * (p % 2)
        k(f"v_pk_mul_f32 {vr(t,2)}, {re}, {c}\nv_pk_mul_f32 {vr(t+2,2)}, {re}, {s}")
        k(f"v_pk_fma_f32 {re}, {im}, {s}, {vr(t,2)} {NEG2}")
        k(f"v_pk_fma_f32 {im}, {im}, {c}, {vr(t+2,2)}")
    for g in range(4):
        k(f"ds_read_b128 {vr(WU+4*g,4)}, v29 offset:{REV_C+16*g}")
    SW = "op_sel:[1,0,0] op_sel_hi:[0,1,1]"
    k("s_waitcnt lgkmcnt(4)")
    for p in range(8):
        re, im = vr(DA+2*p, 2), vr(DA+16+2*p, 2)
        mc, ms = vr(WM+2*p, 2), vr(WM+16+2*p, 2)
        er = vr(OP+14-2*p, 2)
        k(f"v_pk_fma_f32 {re}, {er}, {mc}, {re} {SW}\nv_pk_fma_f32 {im}, {er}, {ms}, {im} {SW}")
    k("s_waitcnt lgkmcnt(0)")
    for p in range(8):
        re, im = vr(DA+2*p, 2), vr(DA+16+2*p, 2)
        mc, ms = vr(WM+2*p, 2), vr(WM+16+2*p, 2)
        ei = vr(WU+14-2*p, 2)
        k(f"v_pk_fma_f32 {re}, {ei}, {ms}, {re} {SW}\nv_pk_fma_f32 {im}, {ei}, {mc}, {im} {SW} {NEG2}")
        k(f"v_cvt_pk_bf16_f32 v{OP+p}, v{DA+2*p}, v{DA+2*p+1}\nv_cvt_pk_bf16_f32 v{OP+8+p}, v{DA+16+2*p}, v{DA+16+2*p+1}")
    k("s_nop 1")
    for n, (Ls, Le) in enumerate(sp_pw[:-1]):
        k(f"s_cmp_eq_u32 s{S_LAY}, {n}\ns_cbranch_scc1 {Le}")
    k(f"s_branch {sp_pw[-1][1]}")

def flush_deferred(k, deferred):
    for Ls, Le, X, dst in deferred:
        k.label(Ls)
        for e in range(2):
            for hh in range(2):
                d = vr(dst + 4*e + 2*hh, 2)
                xi = vr(X + 8*e + 4 + 2*hh, 2)
                k(f"v_pk_mul_f32 v[30:31], {xi}, 0.5 op_sel_hi:[1,0]\nv_pk_fma_f32 {d}, v[30:31], {xi}, {d}")
        k(f"s_branch {Le}")

HEADER = """; Kernarg layout for this problem (72 bytes, ptrs only, base s[0:1]):
"""

def emit(stop=None, listform=True, prof=False):
    k = gen(stop, prof=prof)
    k.label("L_fail")
    k("s_mov_b64 exec, -1\ns_waitcnt vmcnt(0) lgkmcnt(0)")
    k.label("L_end")
    k("s_endpgm")
    body = k.text()
    launch = f"; @launch kernel={NAME} grid=(256,1,1) block=(256,1,1) lds={LDS_BYTES}" if listform else f"; @launch grid=(256,1,1) block=(256,1,1) lds={LDS_BYTES}"
    return f"""{HEADER}{launch}
.amdgcn_target "amdgcn-amd-amdhsa--gfx950"
.text
.globl {NAME}
.p2align 8
.type {NAME},@function
{NAME}:
{body}
.fill {CODE_BYTES // 4}, 4, 0xbf800000
.section .rodata,"a"
.p2align 6
.amdhsa_kernel {NAME}
  .amdhsa_next_free_vgpr 512
  .amdhsa_next_free_sgpr 96
  .amdhsa_accum_offset 256
  .amdhsa_group_segment_fixed_size 0
  .amdhsa_kernarg_size 72
  .amdhsa_user_sgpr_count 2
  .amdhsa_user_sgpr_kernarg_segment_ptr 1
  .amdhsa_system_sgpr_workgroup_id_x 1
.end_amdhsa_kernel
"""

if __name__ == "__main__":
    stop = sys.argv[2] if len(sys.argv) > 2 else None
    open(sys.argv[1], "w").write(emit(stop))
```

```python
import sys
sys.path.insert(0, 'work')
from asmdsl import Kernel

NAME = "interleave_layers__spectral_gfnet__spectral_gfnet__prompt_kernel"

NREP    = 8
WS_EP   = 0
WS_FL   = 0x100000
WS_SM   = 0x40000
WS_S0   = WS_SM
WS_M0   = WS_SM + 0x2000
WS_V0   = WS_SM + 0x4000
WS_H2   = WS_SM + 0x6000
SM_BYTES = 0x6000 + 3 * NREP * 0x2000
WS_H1   = 0x200000
WS_E0   = 0x1000000
WS_E1   = 0x1400000
WS_WA   = 0x1800000
WS_WB   = 0x2000000
WS_DBG  = 0x3000000
WS_SIZE = 0x8000000

RO_PLANE = 1216 * 4
RO_COMP  = 4 * RO_PLANE + 32
L_OPS  = 0
L_AX   = 16384
L_SM   = 49152
L_RQ   = L_OPS
L_RO   = 50176
WSEG   = 528
L_WS   = L_RO + 39168
L_WS2  = L_WS + 16896
L_REV  = L_WS2 + 16896
REV_ROW = 36 * 4
REV_C  = 33 * REV_ROW + 48
LDS_BYTES = L_REV + 4 * REV_C

V_TID, V_L, V_PI, V_H, V_PIF, V_L16, V_T16 = 0, 1, 2, 3, 4, 5, 6
V_XO, V_H16, V_SC, V_OWN, V_QT = 7, 8, 9, 10, 11
P0 = 12
V_SC0 = 21
TF, TI, WU, DA, BA, WM, OP, TMP = 32, 64, 96, 128, 160, 192, 224, 240
RS = TMP + 8
A_F0, A_SA, A_IB, A_ID, A_XA, A_XH, A_WA, A_WB, A_WMA, A_WMB, A_R4 = 0, 24, 48, 72, 80, 96, 128, 144, 160, 176, 192
A_LB = 224
SRD_X, SRD_O, SRD_W, SRD_D, SRD_AR, SRD_AI, SRD_BR, SRD_BI = 4, 8, 12, 16, 20, 24, 28, 32
S_V, S_E, S_C, S_SP, S_LAY = 36, 37, 38, 39, 40
SPIN_MAX = 1 << 16
CODE_BYTES = 32768

def vr(b, n): return f"v[{b}:{b+n-1}]"
def ar(b, n): return f"a[{b}:{b+n-1}]"
def sr(b, n): return f"s[{b}:{b+n-1}]"

STAMPS = []
def gen(stop=None, prof=False):
    k = Kernel()
    uid = [0]
    STAMPS.clear()
    def lab(p):
        uid[0] += 1
        return f"L_{p}_{uid[0]}"
    def stamp(name, loop=False):
        if not prof: return
        k("s_memrealtime s[84:85]\ns_waitcnt lgkmcnt(0)")
        if loop:
            ln = [x[0] for x in STAMPS if x[1]]
            if name not in ln: STAMPS.append((name, True)); ln.append(name)
            idx = ln.index(name)
            k(f"s_mul_i32 s86, s{S_LAY}, 10\ns_add_u32 s86, s86, {24+idx}\ns_mov_b32 m0, s86\ns_nop 0\nv_writelane_b32 v22, s84, m0")
        else:
            idx = len([x for x in STAMPS if not x[1]])
            STAMPS.append((name, False))
            k(f"v_writelane_b32 v22, s84, {idx}")
    def dbg_dump(regs, kind='v'):
        N = len(regs)
        k(f"s_lshl_b32 s41, s2, 2\ns_add_u32 s41, s41, s{S_V}\ns_mul_i32 s41, s41, {N*256}\ns_add_u32 s41, s41, {WS_DBG}")
        k(f"v_lshlrev_b32 v31, 2, v{V_L}")
        k("s_nop 15\ns_nop 15")
        for r in regs:
            k(f"buffer_store_dword {kind}{r}, v31, {sr(SRD_W,4)}, s41 offen")
            k("s_add_u32 s41, s41, 256")
        k("s_waitcnt vmcnt(0)\ns_endpgm")
    def checkpoint(name, regs=None, kind='v'):
        if stop == name:
            if regs is not None: dbg_dump(regs, kind)
            else: k("s_waitcnt vmcnt(0) lgkmcnt(0)\ns_endpgm")
            return True
        return False
    def mfma(d, a, b, c): k(f"v_mfma_f32_32x32x16_bf16 {vr(d,16)}, {a}, {b}, {c}")
    def dft(dst, op, fam, data_is_A, inverse, acc, fill=None, per=5, midwait=None):
        C, S, nS = fam, fam + 8, fam + 16
        s_re, s_im = (nS, S) if inverse else (S, nS)
        for t in (0, 1):
            if t == 1 and midwait: k(midwait)
            xr, xi = vr(op + 4*t, 4), vr(op + 8 + 4*t, 4)
            for n, (d, x, m) in enumerate([(dst, xr, C), (dst + 16, xi, C), (dst, xi, s_re), (dst + 16, xr, s_im)]):
                cst = ar(m + 4*t, 4)
                cin = "0" if (not acc and t == 0 and n < 2) else vr(d, 16)
                if data_is_A: mfma(d, x, cst, cin)
                else: mfma(d, cst, x, cin)
                if fill:
                    for _ in range(per):
                        if fill: k(fill.pop(0))
    def lines(txt): return [x for x in txt.split("\n") if x.strip()]
    NEG2 = "neg_lo:[0,1,0] neg_hi:[0,1,0]"
    def cmul_pack(src, tab, op, conj):
        for p in range(8):
            re, im = vr(src + 2*p, 2), vr(src + 16 + 2*p, 2)
            c, s = vr(tab + 2*p, 2), vr(tab + 16 + 2*p, 2)
            t1, t2 = TMP + (p % 2) * 4, TMP + (p % 2) * 4 + 2
            k(f"v_pk_mul_f32 {vr(t1,2)}, {re}, {c}")
            k(f"v_pk_mul_f32 {vr(t2,2)}, {im}, {c}")
            k(f"v_pk_fma_f32 {vr(t1,2)}, {im}, {s}, {vr(t1,2)} {NEG2 if conj else ''}")
            k(f"v_pk_fma_f32 {vr(t2,2)}, {re}, {s}, {vr(t2,2)} {'' if conj else NEG2}")
            k(f"v_cvt_pk_bf16_f32 v{op+p}, v{t1}, v{t1+1}")
            k(f"v_cvt_pk_bf16_f32 v{op+8+p}, v{t2}, v{t2+1}")
    def angles(dc, ds, v_start, v_step, n=16, scale=None):
        k(f"v_add_f32 v23, v{v_start}, v{v_step}")
        k(f"v_cos_f32 v{dc}, v{v_start}\nv_sin_f32 v{ds}, v{v_start}\nv_cos_f32 v{dc+1}, v23\nv_sin_f32 v{ds+1}, v23")
        k(f"v_add_f32 v23, v{v_step}, v{v_step}")
        k("v_cos_f32 v20, v23\nv_sin_f32 v21, v23")
        if scale is not None:
            k(f"v_pk_mul_f32 {vr(dc,2)}, {vr(dc,2)}, {scale} op_sel_hi:[1,0]\nv_pk_mul_f32 {vr(ds,2)}, {vr(ds,2)}, {scale} op_sel_hi:[1,0]")
        for p in range(1, n // 2):
            C0, S0, C1, S1 = vr(dc+2*p-2, 2), vr(ds+2*p-2, 2), vr(dc+2*p, 2), vr(ds+2*p, 2)
            k(f"v_pk_mul_f32 {C1}, {C0}, v[20:21] op_sel_hi:[1,0]")
            k(f"v_pk_mul_f32 {S1}, {S0}, v[20:21] op_sel_hi:[1,0]")
            k(f"v_pk_fma_f32 {C1}, {S0}, v[20:21], {C1} op_sel:[0,1,0] op_sel_hi:[1,1,1] {NEG2}")
            k(f"v_pk_fma_f32 {S1}, {C0}, v[20:21], {S1} op_sel:[0,1,0] op_sel_hi:[1,1,1]")
    def family(fam, c, s):
        for p in range(8):
            t = TMP + 4 * (p % 2)
            k(f"v_cvt_pk_bf16_f32 v{t}, v{c+2*p}, v{c+2*p+1}")
            k(f"v_cvt_pk_bf16_f32 v{t+1}, v{s+2*p}, v{s+2*p+1}")
            k(f"v_cvt_pk_bf16_f32 v{t+2}, -v{s+2*p}, -v{s+2*p+1}")
            for i in range(3): k(f"v_accvgpr_write_b32 a{fam+8*i+p}, v{t+i}")
    def rne_bf16(dst, src):
        k(f"v_cvt_pk_bf16_f32 v{dst}, v{src}, v{src}\nv_and_b32 v{dst}, 0xffff0000, v{dst}")
    def sd_from_var(v):
        k(f"v_max_f32 v{v}, 0, v{v}")
        rne_bf16(v, v)
        k(f"v_add_f32 v{v}, 0x3727c5ac, v{v}")
        rne_bf16(v, v)
        k(f"v_sqrt_f32 v{v}, v{v}")
        rne_bf16(v, v)
    def poll(loads, words, kind='v'):
        L = lab("pb")
        k("s_mov_b32 s46, 0")
        k.label(L)
        for x in loads: k(x)
        k("s_waitcnt vmcnt(0)")
        k(f"v_max_u32 v31, v{words[0]}, v{words[1]}")
        rest = words[2:]
        while len(rest) >= 2:
            k(f"v_max3_u32 v31, v31, v{rest[0]}, v{rest[1]}"); rest = rest[2:]
        if rest: k(f"v_max_u32 v31, v31, v{rest[0]}")
        k("v_cmp_eq_u32 vcc, -1, v31")
        k(f"s_add_u32 s46, s46, 1\ns_cmp_ge_u32 s46, {SPIN_MAX}\ns_cbranch_scc1 L_fail")
        k("s_mov_b64 exec, vcc")
        k(f"s_cbranch_execnz {L}")
        k("s_mov_b64 exec, -1")
    def ld4(dst, voff, soff, off=0, kind='v'):
        d = vr(dst, 4) if kind == 'v' else ar(dst, 4)
        return f"buffer_load_dwordx4 {d}, v{voff}, {sr(SRD_W,4)}, {soff} offen offset:{off} sc1"
    def blk_loads(dst, sbase):
        return [ld4(dst + 4*i, V_T16, f"s{sbase+i}") for i in range(4)]
    def set4(sb, expr_s):
        k(f"s_mov_b32 s{sb}, {expr_s}")
        for i in range(1, 4): k(f"s_add_u32 s{sb+i}, {expr_s}, {4096*i}")
    def pinv(dst, src, t):
        k(f"v_and_b32 v{dst}, 3, v{src}")
        k(f"v_bfe_u32 v{t}, v{src}, 4, 1\nv_lshl_or_b32 v{dst}, v{t}, 2, v{dst}")
        k(f"v_bfe_u32 v{t}, v{src}, 2, 2\nv_lshl_or_b32 v{dst}, v{t}, 3, v{dst}")
    def init_block(sreg, n=4):
        for i in range(n):
            k(f"s_add_u32 s47, {sreg}, {4096*i}")
            k(f"buffer_store_dwordx4 v[24:27], v{V_T16}, {sr(SRD_W,4)}, s47 offen sc1")

    def wprep_setup():
        k("s_lshr_b32 s41, s2, 2\ns_and_b32 s41, s41, 7")
        k("s_lshr_b32 s42, s41, 1\ns_lshl_b32 s42, s42, 2\ns_and_b32 s43, s41, 1\ns_lshl_b32 s43, s43, 4\ns_or_b32 s42, s42, s43")
        k("s_lshl_b32 s42, s42, 1\ns_lshr_b32 s43, s2, 1\ns_and_b32 s43, s43, 1\ns_add_u32 s42, s42, s43")
        k("s_lshr_b32 s43, s2, 5\ns_lshl_b32 s43, s43, 8\ns_add_u32 s56, s42, s43")
        k("s_and_b32 s42, s2, 1\ns_lshl_b32 s42, s42, 1\ns_lshr_b32 s43, s2, 1\ns_and_b32 s43, s43, 1\ns_add_u32 s42, s42, s43\ns_lshl_b32 s57, s42, 12")
        k("s_lshr_b32 s42, s2, 5\ns_and_b32 s43, s42, 3\ns_lshl_b32 s43, s43, 10\ns_add_u32 s57, s57, s43")
        k("s_lshr_b32 s42, s42, 2\ns_lshl_b32 s42, s42, 9\ns_add_u32 s57, s57, s42\ns_lshl_b32 s41, s41, 6\ns_add_u32 s57, s57, s41")
    def wprep_addr():
        k(f"s_lshl_b32 s41, s{S_V}, 6\ns_add_u32 s41, s41, s56\ns_mul_i32 s41, s41, 1026\ns_and_b32 s42, s2, 1\ns_lshl_b32 s42, s42, 9\ns_add_u32 s41, s41, s42\ns_and_b32 s41, s41, -4")
        k(f"v_and_b32 v28, 31, v{V_L}\nv_lshlrev_b32 v28, 4, v28\nv_mul_u32_u24 v29, 2052, v{V_H}\nv_add_u32 v28, v28, v29")
        k(f"v_and_b32 v29, 3, v{V_L}\nv_mul_u32_u24 v29, 2052, v29")
        k("s_add_u32 s42, s41, 4104")
    def wprep_load(srd_r, srd_i, dst, kind):
        R = (lambda b, n: vr(b, n)) if kind == 'v' else (lambda b, n: ar(b, n))
        for a, srd in enumerate((srd_r, srd_i)):
            k(f"buffer_load_dwordx4 {R(dst+8*a,4)}, v28, {sr(srd,4)}, s41 offen")
            k(f"buffer_load_dwordx4 {R(dst+8*a+4,4)}, v28, {sr(srd,4)}, s42 offen")
            k(f"buffer_load_dword {kind}{dst+16+a}, v29, {sr(srd,4)}, s41 offen offset:512")
    def wprep_load_special():
        k(f"s_cmp_eq_u32 s{S_V}, 1\ns_cselect_b32 s16, s68, s66\ns_cselect_b32 s17, s69, s67")
        k(f"s_cmp_eq_u32 s{S_V}, 2\ns_cselect_b32 s16, s72, s16\ns_cselect_b32 s17, s73, s17")
        k(f"s_cmp_eq_u32 s{S_V}, 3\ns_cselect_b32 s16, s74, s16\ns_cselect_b32 s17, s75, s17")
        k(f"s_mov_b32 s18, {2048*513*2}\ns_mov_b32 s19, 0x00020000")
        k(f"v_bfe_u32 v30, v{V_L}, 2, 2\nv_and_b32 v31, 3, v{V_L}\nv_lshlrev_b32 v31, 6, v31\nv_lshl_add_u32 v30, v30, 1, v31\nv_add_u32 v30, s56, v30")
        k("v_sub_u32 v31, 0x800, v30\nv_and_b32 v31, 0x7ff, v31\nv_mul_u32_u24 v30, 1026, v30\nv_mul_u32_u24 v31, 1026, v31")
        k(f"s_and_b32 s43, s2, 1\ns_lshl_b32 s43, s43, 6\nv_add_u32 v27, s43, v{V_L}\nv_cmp_gt_u32 vcc, 16, v27\nv_mov_b32 v27, 0x7ffffff0")
        k("v_cndmask_b32 v30, v27, v30, vcc\nv_cndmask_b32 v31, v27, v31, vcc\ns_mov_b64 s[86:87], vcc")
        n = 0
        for col in (0, 1024):
            for va in (30, 31):
                k(f"buffer_load_ushort v{WU+18+n}, v{va}, s[16:19], 0 offen offset:{col}"); n += 1
    def wprep_lds_write(src, kind, base):
        R = (lambda b, n: vr(b, n)) if kind == 'v' else (lambda b, n: ar(b, n))
        k(f"s_mul_i32 s41, s{S_V}, {4*WSEG}\ns_add_u32 s41, s41, {base}")
        k(f"v_and_b32 v30, 31, v{V_L}\nv_lshlrev_b32 v30, 4, v30\nv_mul_u32_u24 v31, {WSEG}, v{V_H}\nv_add3_u32 v30, v30, v31, s41")
        k(f"v_and_b32 v31, 3, v{V_L}\nv_mul_u32_u24 v31, {WSEG}, v31\nv_add_u32 v31, s41, v31")
        for a in range(2):
            k(f"ds_write_b128 v30, {R(src+8*a,4)} offset:{a*16*WSEG}")
            k(f"ds_write_b128 v30, {R(src+8*a+4,4)} offset:{a*16*WSEG+2*WSEG}")
            k(f"ds_write_b32 v31, {kind}{src+16+a} offset:{a*16*WSEG+512}")
    def wprep_gather(wsbase, dst, hi, base, sa, va):
        o = []
        A = lambda t: o.extend(lines(t))
        A(f"v_lshrrev_b32 v{va}, 2, v{V_TID}\nv_and_b32 v{va+1}, 3, v{V_TID}\nv_mul_u32_u24 v{va+1}, {WSEG}, v{va+1}")
        A(f"s_and_b32 s{sa}, s2, 2\ns_add_u32 s{sa}, s{sa}, {base}\nv_add_u32 v{va+1}, s{sa}, v{va+1}")
        A(f"s_and_b32 s{sa+1}, s2, 1\ns_sub_u32 s{sa+1}, 0, s{sa+1}")
        for kk in range(4):
            A(f"v_add_u32 v{va+2}, {kk*64}, v{va}\nv_xor_b32 v{va+2}, s{sa+1}, v{va+2}\nv_subrev_u32 v{va+2}, s{sa+1}, v{va+2}\nv_and_b32 v{va+2}, 0xff, v{va+2}")
            A(f"v_lshl_add_u32 v{va+2}, v{va+2}, 1, v{va+1}")
            for i in range(4):
                A(f"ds_read_u16 v{dst+4*kk+i}, v{va+2} offset:{i*4*WSEG}")
                A(f"ds_read_u16 v{hi+4*kk+i}, v{va+2} offset:{(16+i*4)*WSEG}")
        A(f"s_add_u32 s{sa}, s57, {wsbase}")
        for kk in range(4):
            A(f"s_waitcnt lgkmcnt({15 if kk < 2 else 8*(3-kk)})")
            for i in range(4): A(f"v_lshl_or_b32 v{dst+4*kk+i}, v{hi+4*kk+i}, 16, v{dst+4*kk+i}")
            A(f"s_add_u32 s{sa+1}, s{sa}, {kk*64*16384}")
            A(f"buffer_store_dwordx4 {vr(dst+4*kk,4)}, v{V_SC0 if kk == 0 else V_SC}, {sr(SRD_W,4)}, s{sa+1} offen sc1")
        return o
    def wprep_special():
        sp = WU + 18
        for n in range(4): k(f"v_lshlrev_b32 v{sp+n}, 16, v{sp+n}")
        k(f"s_cmp_eq_u32 s{S_E}, 0\ns_cselect_b32 s42, 1.0, -1.0")
        k(f"v_fma_f32 v{sp}, v{sp+1}, s42, v{sp}\nv_fma_f32 v{sp+2}, v{sp+3}, s42, v{sp+2}")
        k(f"v_add_f32 v{sp+1}, v{sp}, v{sp+2}\nv_sub_f32 v{sp+3}, v{sp}, v{sp+2}")
        k(f"v_mul_f32 v{sp+1}, 0x3e800000, v{sp+1}\nv_mul_f32 v{sp+3}, 0x3e800000, v{sp+3}")
        k(f"v_cvt_pk_bf16_f32 v{sp}, v{sp+1}, v{sp+1}\nv_cvt_pk_bf16_f32 v{sp+2}, v{sp+3}, v{sp+3}")
        k(f"s_lshl_b32 s41, s{S_C}, 7\ns_lshl_b32 s42, s{S_E}, 1\ns_add_u32 s41, s41, s42\ns_add_u32 s41, s41, {L_SM+512}")
        k(f"v_and_b32 v30, 15, v{V_L}\nv_lshlrev_b32 v30, 2, v30\nv_add_u32 v30, s41, v30")
        k("s_mov_b64 exec, 0xffff")
        k(f"ds_write_b16 v30, v{sp}\nds_write_b16 v30, v{sp+2} offset:64")
        k("s_mov_b64 exec, -1")
    def wprep_special_store():
        L = lab("wss")
        k(f"s_and_b32 s42, s2, 1\ns_xor_b32 s41, s{S_V}, 1\ns_or_b32 s42, s42, s41\ns_cmp_lg_u32 s42, 0\ns_cbranch_scc1 {L}")
        k(f"v_lshlrev_b32 v30, 2, v{V_L}\nds_read_b32 v29, v30 offset:{L_SM+512}")
        k(f"v_and_b32 v30, 15, v{V_L}\nv_lshlrev_b32 v30, 2, v30\nv_bfe_u32 v31, v{V_L}, 4, 1\nv_lshl_add_u32 v30, v31, 22, v30\nv_lshl_add_u32 v30, v{V_H}, 23, v30")
        k(f"s_add_u32 s41, s57, {WS_WA}")
        k("s_waitcnt lgkmcnt(0)")
        k(f"buffer_store_dword v29, v30, {sr(SRD_W,4)}, s41 offen sc1")
        k.label(L)
    def w_unpack_v(src, dre, dim):
        for r in range(16):
            k(f"v_lshlrev_b32 v{dre+r}, 16, v{src+r}\nv_and_b32 v{dim+r}, 0xffff0000, v{src+r}")
    def w_unpack(a_w, dre, dim):
        for r in range(16): k(f"v_accvgpr_read_b32 v{dim+r}, a{a_w+r}")
        w_unpack_v(dim, dre, dim)

    k(f"s_cmp_ge_u32 s2, 256\ns_cbranch_scc1 L_end")
    k("s_load_dwordx16 s[64:79], s[0:1], 0\ns_load_dwordx2 s[80:81], s[0:1], 64")
    k("s_getpc_b64 s[82:83]")
    k(f"v_lshlrev_b32 v30, 7, v0\nv_min_u32 v30, {CODE_BYTES-4}, v30")
    k("global_load_dword a255, v30, s[82:83]")
    stamp("start")
    k(f"v_and_b32 v{V_L}, 63, v0\nv_lshrrev_b32 v30, 6, v0")
    k(f"v_lshlrev_b32 v{V_T16}, 4, v0")
    k(f"v_readfirstlane_b32 s{S_V}, v30")
    k(f"v_lshrrev_b32 v{V_H}, 5, v{V_L}\nv_lshlrev_b32 v{V_L16}, 4, v{V_L}")
    k(f"v_and_b32 v{V_PI}, 3, v0\nv_bfe_u32 v30, v0, 3, 2\nv_lshl_or_b32 v{V_PI}, v30, 2, v{V_PI}\nv_bfe_u32 v30, v0, 2, 1\nv_lshl_or_b32 v{V_PI}, v30, 4, v{V_PI}")
    k(f"v_lshlrev_b32 v{V_XO}, 6, v{V_PI}\nv_lshl_add_u32 v{V_XO}, v{V_H}, 5, v{V_XO}")
    k(f"s_lshr_b32 s41, s2, 5\ns_lshl_b32 s41, s41, 2\ns_add_u32 s41, s41, s{S_V}\ns_lshl_b32 s41, s41, 5\ns_and_b32 s42, s2, 31\ns_add_u32 s41, s41, s42")
    k("s_lshl_b32 s50, s41, 11\ns_add_u32 s51, s50, 0x200000")
    wprep_setup()
    wprep_addr()
    k("s_waitcnt lgkmcnt(0)")
    def srd(d, p, size):
        k(f"s_mov_b32 s{d}, s{p}\ns_mov_b32 s{d+1}, s{p+1}\ns_mov_b32 s{d+2}, {size}\ns_mov_b32 s{d+3}, 0x00020000")
    k(f"s_load_dword s95, s[80:81], {WS_EP}")
    srd(SRD_X, 64, 4194304)
    for e in range(2):
        for t in range(2):
            k(f"buffer_load_dwordx4 {ar(A_XA+8*e+4*t,4)}, v{V_XO}, {sr(SRD_X,4)}, s{50+e} offen offset:{16*t}")
    WB = 2048 * 513 * 2
    k("s_mov_b32 s92, s41\ns_mov_b32 s93, s42\nv_mov_b32 v18, v28\nv_mov_b32 v19, v29")
    srd(SRD_W, 80, WS_SIZE)
    k(f"s_lshl_b32 s58, s2, 14")
    k(f"s_and_b32 s59, s2, 127\ns_lshl_b32 s59, s59, 14\ns_lshr_b32 s42, s2, 7\ns_lshl_b32 s42, s42, 13\ns_add_u32 s60, s59, s42")
    for i in range(4): k(f"v_mov_b32 v{24+i}, -1")
    k(f"s_add_u32 s42, s60, {WS_H1}"); init_block("s42", 2)
    k(f"s_mul_i32 s43, s2, 768\ns_add_u32 s43, s43, {WS_H2}")
    k(f"v_cmp_gt_u32 vcc, 48, v0\nv_mov_b32 v29, 0x7ffffff0\nv_cndmask_b32 v30, v29, v{V_T16}, vcc")
    k(f"buffer_store_dwordx4 v[24:27], v30, {sr(SRD_W,4)}, s43 offen sc1")
    srd(SRD_AR, 66, WB); srd(SRD_AI, 68, WB); srd(SRD_BR, 72, WB); srd(SRD_BI, 74, WB)
    srd(SRD_O, 76, 4194304)
    k(f"s_and_b32 s{S_E}, s{S_V}, 1\ns_lshr_b32 s{S_C}, s{S_V}, 1")
    k(f"s_or_b32 s41, s2, s{S_C}\ns_cmp_eq_u32 s41, 0\ns_cselect_b32 s{S_SP}, 1, 0")
    stamp("issued")
    k(f"v_cvt_f32_u32 v{V_PIF}, v{V_PI}\nv_cvt_f32_u32 v{V_H16}, v{V_H}\nv_mul_f32 v{V_H16}, 0x41800000, v{V_H16}")
    k(f"v_lshlrev_b32 v28, 4, v{V_H}\nv_sub_u32 v28, v{V_PI}, v28")
    k("v_and_b32 v27, 1, v28\nv_lshlrev_b32 v27, 4, v27\nv_mov_b32 v26, 0x3f80\nv_lshlrev_b32 v26, v27, v26\nv_ashrrev_i32 v28, 1, v28")
    for p in range(8):
        k(f"v_cmp_eq_u32 vcc, {p}, v28\nv_cndmask_b32 v{TMP+p}, 0, v26, vcc")
    for p in range(8): k(f"v_accvgpr_write_b32 a{A_ID+p}, v{TMP+p}")
    k(f"v_mul_f32 v28, 0x3d000000, v{V_PIF}\nv_mul_f32 v27, v28, v{V_H16}")
    angles(DA, DA + 16, 27, 28)
    family(A_F0, DA, DA + 16)
    k(f"v_mul_f32 v28, 0x3a800000, v{V_PIF}\nv_mul_f32 v27, v28, v{V_H16}")
    angles(WM, WM + 16, 27, 28)
    RA = TI
    k(f"v_lshrrev_b32 v28, 2, v{V_TID}")
    k(f"v_and_b32 v27, 2, v{V_TID}\nv_cmp_ne_u32 s[48:49], 0, v27")
    k(f"v_and_b32 v27, 1, v{V_TID}\nv_cmp_ne_u32 s[52:53], 0, v27")
    k(f"v_mul_u32_u24 v27, {RO_COMP}, v27\nv_add_u32 v27, {L_RO}, v27")
    def qaddr(dst, q, base, t):
        k(f"v_lshrrev_b32 v{t}, 5, v{q}\nv_mul_u32_u24 v{dst}, 144, v{t}\nv_lshrrev_b32 v{t}, 9, v{q}\nv_lshl_add_u32 v{dst}, v{t}, 6, v{dst}")
        k(f"v_and_b32 v{t}, 31, v{q}\nv_lshl_add_u32 v{dst}, v{t}, 2, v{dst}\nv_add_u32 v{dst}, v{dst}, v{base}")
    for kk in range(4):
        k(f"v_add_u32 v26, {kk*64}, v28\nv_sub_u32 v25, 0x200, v26")
        if kk == 0:
            k("v_cmp_eq_u32 vcc, 0, v26\nv_mov_b32 v24, 0x100\nv_cndmask_b32 v25, v25, v24, vcc")
        k("v_cndmask_b32 v26, v26, v25, s[48:49]")
        k("v_sub_u32 v25, 0x400, v26\nv_and_b32 v25, 0x3ff, v25")
        k("v_cndmask_b32 v24, v25, v26, s[52:53]\nv_cndmask_b32 v25, v26, v25, s[52:53]")
        qaddr(RA + kk, 24, 27, 23)
        qaddr(RA + 4 + kk, 25, 27, 23)
    A512 = (16*36 + 16) * 4
    k(f"v_cmp_gt_u32 vcc, 2, v{V_TID}\nv_sub_u32 v24, {2*L_RO + RO_COMP + A512}, v27\nv_cndmask_b32 v{RA+4}, v{RA+4}, v24, vcc")
    k("s_mov_b64 s[88:89], vcc")
    k(f"v_and_b32 v26, 3, v{V_TID}\nv_lshlrev_b32 v26, 4, v26\nv_lshl_add_u32 v{V_SC}, v28, 14, v26")
    k(f"s_and_b32 s41, s2, 1\ns_lshl_b32 s41, s41, 8\nv_add_u32 v26, s41, v{V_TID}\nv_cmp_gt_u32 vcc, 4, v26\nv_mov_b32 v26, 0x7ffffff0\nv_cndmask_b32 v17, v{V_SC}, v26, vcc")
    k(f"s_lshl_b32 s41, s{S_V}, 12\nv_add_u32 v{V_OWN}, s41, v{V_L16}")
    k(f"s_lshl_b32 s41, s{S_C}, 10\ns_lshl_b32 s42, s{S_E}, 3\ns_add_u32 s41, s41, s42\nv_add_u32 v{V_QT}, s41, v{V_L16}")
    k(f"v_mul_u32_u24 v20, 144, v{V_PI}\nv_lshrrev_b32 v31, 4, v{V_PI}\nv_add_u32 v31, v31, v{V_H}\nv_lshl_add_u32 v20, v31, 6, v20")
    k(f"s_mul_i32 s41, s{S_V}, {RO_PLANE}\ns_add_u32 s41, s41, {L_RO}\nv_add_u32 v20, s41, v20")
    k(f"v_mov_b32 v{V_SC0}, v17")
    stamp("tabs")
    k("s_waitcnt vmcnt(3)")
    stamp("arr")
    XS = BA
    for e in range(2): mfma(XS + 16*e, ar(A_XA+8*e, 4), ar(A_ID, 4), "0")
    for e in range(2): mfma(XS + 16*e, ar(A_XA+8*e+4, 4), ar(A_ID+4, 4), vr(XS+16*e, 16))
    k("s_mov_b32 s41, s92\ns_mov_b32 s42, s93\nv_mov_b32 v28, v18\nv_mov_b32 v29, v19")
    wprep_load(SRD_AR, SRD_AI, WU, 'v')
    k(f"v_readlane_b32 s52, v{XS}, 0\nv_readlane_b32 s54, v{XS+16}, 0")
    for p in range(8):
        for e in range(2):
            k(f"v_pk_add_f32 {vr(XS+16*e+2*p,2)}, {vr(XS+16*e+2*p,2)}, s[{52+2*e}:{53+2*e}] op_sel_hi:[1,0] neg_lo:[0,1] neg_hi:[0,1]")
    for e in range(2):
        x = XS + 16*e
        k(f"v_pk_add_f32 {vr(TMP+2*e,2)}, {vr(x,2)}, {vr(x+2,2)}")
        k(f"v_pk_mul_f32 {vr(TMP+4+2*e,2)}, {vr(x,2)}, {vr(x,2)}")
    for p in range(1, 8):
        for e in range(2):
            x = XS + 16*e + 2*p
            if p >= 2: k(f"v_pk_add_f32 {vr(TMP+2*e,2)}, {vr(TMP+2*e,2)}, {vr(x,2)}")
            k(f"v_pk_fma_f32 {vr(TMP+4+2*e,2)}, {vr(x,2)}, {vr(x,2)}, {vr(TMP+4+2*e,2)}")
    for i in range(4): k(f"v_add_f32 v{TMP+2*i}, v{TMP+2*i}, v{TMP+2*i+1}")
    S0, S1, Q0, Q1 = TMP, TMP+2, TMP+4, TMP+6
    k(f"v_permlane32_swap_b32 v{S0}, v{S1}\nv_permlane32_swap_b32 v{Q0}, v{Q1}")
    k(f"v_add_f32 v{S0}, v{S0}, v{S1}\nv_add_f32 v{Q0}, v{Q0}, v{Q1}")
    k(f"v_mov_b32 v{S1}, v{S0}\nv_mov_b32 v{Q1}, v{Q0}")
    k(f"v_permlane16_swap_b32 v{S0}, v{S1}\nv_permlane16_swap_b32 v{Q0}, v{Q1}")
    k(f"v_add_f32 v{S0}, v{S0}, v{S1}\nv_add_f32 v{Q0}, v{Q0}, v{Q1}")
    PV, MN, MB, VV = TMP+8, TMP+9, TMP+10, TMP+11
    fl = [f"v_mov_b32 v{PV}, s52", f"v_mov_b32 v{MN}, s54", f"v_cmp_eq_u32 vcc, 0, v{V_H}", f"s_lshl_b32 s41, s{S_V}, 2"]
    for n, sh in enumerate((8, 4, 2, 1)):
        k(fl[n])
        k(f"v_add_f32_dpp v{S0}, v{S0}, v{S0} row_ror:{sh} row_mask:0xf bank_mask:0xf")
        k(f"v_add_f32_dpp v{Q0}, v{Q0}, v{Q0} row_ror:{sh} row_mask:0xf bank_mask:0xf")
    k(f"v_cndmask_b32 v{PV}, v{MN}, v{PV}, vcc")
    k(f"v_mul_f32 v{S0}, 0x3a800000, v{S0}\nv_mul_f32 v{Q0}, 0x3a800000, v{Q0}")
    k(f"v_fma_f32 v{Q0}, -v{S0}, v{S0}, v{Q0}")
    k(f"v_add_f32 v{MN}, v{PV}, v{S0}\nv_mov_b32 v{VV}, v{Q0}")
    sd_from_var(Q0)
    rne_bf16(MB, MN)
    k(f"v_rcp_f32 v{S1}, v{Q0}")
    k(f"v_sub_f32 v{MB}, v{PV}, v{MB}")
    k(f"v_mul_f32 v{S1}, 0.5, v{S1}")
    k(f"v_mul_f32 v{MB}, v{MB}, v{S1}")
    k(f"v_mul_f32 v{MN}, 0x44800000, v{MN}")
    k(f"v_readlane_b32 s52, v{S1}, 0\nv_readlane_b32 s53, v{MB}, 0\nv_readlane_b32 s54, v{S1}, 32\nv_readlane_b32 s55, v{MB}, 32")
    k(f"s_add_u32 s41, s41, {L_SM}\nv_lshlrev_b32 v30, 4, v{V_H}\nv_add_u32 v30, s41, v30")
    k(f"v_mul_f32 v{Q0}, 0.5, v{Q0}")
    k(f"ds_write2_b32 v30, v{Q0}, v{MN} offset0:0 offset1:8\nds_write_b32 v30, v{VV} offset:64")
    for p in range(8):
        x0, x1 = XS + 2*p, XS + 16 + 2*p
        t = TMP + 4 * (p % 2)
        for e, x in enumerate((x0, x1)):
            k(f"v_pk_fma_f32 {vr(x,2)}, {vr(x,2)}, s[{52+2*e}:{53+2*e}], s[{52+2*e}:{53+2*e}] op_sel:[0,0,1] op_sel_hi:[1,0,1]")
        k(f"v_pk_add_f32 {vr(t,2)}, {vr(x0,2)}, {vr(x1,2)}\nv_pk_add_f32 {vr(t+2,2)}, {vr(x0,2)}, {vr(x1,2)} neg_lo:[0,1] neg_hi:[0,1]")
        k(f"v_cvt_pk_bf16_f32 v{OP+p}, v{t}, v{t+1}\nv_cvt_pk_bf16_f32 v{OP+8+p}, v{t+2}, v{t+3}")
    stamp("ln")
    dft(DA, OP, A_F0, True, False, False)
    wprep_load_special()
    cmul_pack(DA, WM, OP, False)
    dft(XS, OP, A_F0, True, False, False)
    k("s_waitcnt lgkmcnt(0)\ns_add_u32 s95, s95, 1")
    for comp in range(2):
        for gq in range(4):
            k(f"ds_write_b128 v20, {vr(XS+16*comp+4*gq,4)} offset:{comp*RO_COMP+16*gq}")
    k(f"s_lshl_b32 s43, s2, 6\ns_add_u32 s43, s43, {WS_E0}")
    k("s_waitcnt lgkmcnt(0)")
    stamp("f2")
    k("s_barrier")
    U = RO_PLANE // 256
    for kk in range(4):
        b = DA + 8*kk
        k(f"ds_read2st64_b32 {vr(b,2)}, v{RA+kk} offset0:0 offset1:{U}")
        k(f"ds_read2st64_b32 {vr(b+2,2)}, v{RA+kk} offset0:{2*U} offset1:{3*U}")
        k(f"ds_read2st64_b32 {vr(b+4,2)}, v{RA+4+kk} offset0:0 offset1:{U}")
        k(f"ds_read2st64_b32 {vr(b+6,2)}, v{RA+4+kk} offset0:{2*U} offset1:{3*U}")
    for kk in range(4):
        b = DA + 8*kk; o = OP + 4*kk
        k(f"s_waitcnt lgkmcnt({4*(3-kk)})")
        for hh in range(2):
            k(f"v_pk_add_f32 {vr(TMP+2*hh,2)}, {vr(b+2*hh,2)}, {vr(b+4+2*hh,2)}")
            k(f"v_pk_add_f32 {vr(TMP+4+2*hh,2)}, {vr(b+2*hh,2)}, {vr(b+4+2*hh,2)} neg_lo:[0,1] neg_hi:[0,1]")
        if kk == 0:
            k("s_mov_b64 exec, s[88:89]")
            for hh in range(2):
                k(f"v_pk_add_f32 {vr(TMP+2*hh,2)}, {vr(b+2*hh,2)}, {vr(b+2*hh,2)}")
                k(f"v_pk_add_f32 {vr(TMP+4+2*hh,2)}, {vr(b+4+2*hh,2)}, {vr(b+4+2*hh,2)}")
            k("s_mov_b64 exec, -1")
        for i in range(4): k(f"v_cvt_pk_bf16_f32 v{o+i}, v{TMP+2*i}, v{TMP+2*i+1}")
        k(f"s_add_u32 s47, s43, {kk*64*16384}")
        k(f"buffer_store_dwordx4 {vr(o,4)}, v{V_SC}, {sr(SRD_W,4)}, s47 offen sc1")
    L = lab("st")
    k(f"s_cmp_lg_u32 s{S_V}, 0\ns_cbranch_scc1 {L}")
    k(f"v_add_u32 v30, {L_SM}, v{V_T16}")
    k(f"ds_read_b128 {vr(TMP+8,4)}, v30")
    k("s_and_b32 s42, s2, 3\ns_lshr_b32 s43, s2, 4\ns_and_b32 s43, s43, 1\ns_lshl_b32 s43, s43, 2\ns_or_b32 s42, s42, s43")
    k("s_lshr_b32 s43, s2, 2\ns_and_b32 s43, s43, 3\ns_lshl_b32 s43, s43, 3\ns_or_b32 s42, s42, s43")
    k("s_lshr_b32 s43, s2, 7\ns_lshl_b32 s43, s43, 5\ns_add_u32 s42, s42, s43\ns_lshl_b32 s42, s42, 4")
    k(f"s_lshr_b32 s43, s2, 5\ns_and_b32 s43, s43, 3\ns_lshl_b32 s43, s43, 10\ns_add_u32 s42, s42, s43\ns_add_u32 s42, s42, {WS_S0}")
    k(f"v_lshlrev_b32 v30, 12, v{V_TID}")
    k("s_waitcnt lgkmcnt(0)")
    k("s_mov_b64 exec, 63")
    k(f"buffer_store_dwordx4 {vr(TMP+8,4)}, v30, {sr(SRD_W,4)}, s42 offen sc1")
    k("s_mov_b64 exec, -1")
    k.label(L)
    stamp("e0_st")
    def flag(level):
        L = lab("sf")
        k(f"s_cmp_lg_u32 s{S_V}, 0\ns_cbranch_scc1 {L}")
        k(f"v_mov_b32 v30, s95\ns_lshl_b32 s41, s2, 6\ns_add_u32 s41, s41, {WS_FL + level*131072}\nv_lshlrev_b32 v31, 14, v{V_L}\ns_mov_b64 exec, 0xff")
        k(f"buffer_store_dword v30, v31, {sr(SRD_W,4)}, s41 offen sc1")
        k("s_mov_b64 exec, -1")
        k.label(L)
    k("s_waitcnt vmcnt(4)")
    wprep_lds_write(WU, 'v', L_WS)
    wprep_special()
    k("s_mov_b32 s41, s92\ns_mov_b32 s42, s93\nv_mov_b32 v28, v18\nv_mov_b32 v29, v19")
    wprep_load(SRD_BR, SRD_BI, A_LB, 'a')
    k("s_waitcnt lgkmcnt(0)\ns_barrier")
    gA = wprep_gather(WS_WA, BA + 16, BA, L_WS, 48, 28)
    gA_st = [x for x in gA if x.startswith("buffer_store") or x.startswith("s_add_u32 s49")]
    for x in gA:
        if x not in gA_st: k(x)
    k(f"v_cvt_f32_u32 v26, s{S_E}\nv_fma_f32 v25, 2.0, v{V_PIF}, v26")
    k(f"v_mul_f32 v28, 0x3c800000, v25\nv_mul_f32 v27, v28, v{V_H16}")
    angles(DA, DA + 16, 27, 28)
    family(A_SA, DA, DA + 16)
    k("s_waitcnt vmcnt(6)\ns_barrier")
    stamp("ack")
    flag(0)
    k(f"v_mov_b32 v{V_SC0}, v17")
    for x in gA_st: k(x)
    wprep_special_store()
    k(f"v_mul_f32 v28, 0x3a000000, v25\nv_mul_f32 v27, v28, v{V_H16}")
    angles(TF, TF + 16, 27, 28)
    k(f"v_fma_f32 v25, 2.0, v{V_H16}, v26\nv_mul_f32 v25, v25, v{V_PIF}")
    k(f"v_mul_f32 v28, 0x3d000000, v{V_PIF}\nv_mul_f32 v27, 0x3c800000, v25")
    angles(DA, DA + 16, 27, 28)
    family(A_IB, DA, DA + 16)
    k(f"v_mul_f32 v28, 0x3a800000, v{V_PIF}\nv_mul_f32 v27, 0x3a000000, v25")
    k("s_mov_b32 s62, 0x3a000000")
    angles(TI, TI + 16, 27, 28, scale="s[62:63]")
    k(f"v_mov_b32 v{V_SC0}, v17")
    k(f"v_bfe_u32 v28, v{V_TID}, 2, 5")
    pinv(27, 28, 26)
    k(f"v_lshlrev_b32 v27, 4, v27\nv_lshrrev_b32 v26, 7, v{V_TID}\nv_lshl_add_u32 v27, v26, 3, v27")
    k(f"v_and_b32 v26, 3, v{V_TID}\nv_lshl_add_u32 v18, v26, 12, v27\nv_add_u32 v18, {L_OPS}, v18")
    k(f"v_xor_b32 v26, 1, v26\nv_lshl_add_u32 v19, v26, 12, v27\nv_add_u32 v19, {L_OPS+2048}, v19")
    k(f"s_add_u32 s42, s58, {WS_E0}")
    set4(90, "s42")
    k(f"s_lshl_b32 s61, s{S_V}, 10")
    k(f"s_add_u32 s52, s61, {WS_S0}\ns_add_u32 s53, s52, 4096")
    k(f"s_lshr_b32 s54, s59, 8\ns_add_u32 s54, s54, {WS_V0}\nv_and_b32 v20, 15, v{V_L}\nv_lshlrev_b32 v20, 2, v20")
    k(f"s_lshl_b32 s42, s{S_V}, 12\ns_add_u32 s63, s58, s42\ns_add_u32 s94, s63, {WS_WA}")
    stamp("tabc")
    k("s_waitcnt vmcnt(0)")
    wprep_lds_write(A_LB, 'a', L_WS2)
    k("s_waitcnt lgkmcnt(0)\ns_barrier")
    flag(1)
    stamp("ack2")
    k(f"s_and_b32 s87, s2, 7\ns_lshl_b32 s87, s87, 14\ns_add_u32 s87, s87, {WS_FL}\ns_add_u32 s55, s87, 131072\nv_lshlrev_b32 v25, 6, v{V_TID}")
    def fl_load(level): return f"buffer_load_dword v24, v25, {sr(SRD_W,4)}, {'s87' if level == 0 else 's55'} offen sc1"
    def poll_flags(level, first_loaded=False):
        L = lab("pf")
        k("s_mov_b32 s46, 0")
        if first_loaded: k(f"s_branch {L}_c")
        k.label(L)
        k(fl_load(level))
        k("s_waitcnt vmcnt(0)")
        k.label(f"{L}_c")
        k("v_cmp_ne_u32 vcc, s95, v24")
        k(f"s_add_u32 s46, s46, 1\ns_cmp_ge_u32 s46, {SPIN_MAX}\ns_cbranch_scc1 L_fail")
        k(f"s_mov_b64 exec, vcc\ns_cbranch_execnz {L}\ns_mov_b64 exec, -1")
    poll_flags(0)
    k("s_barrier")
    stamp("fl_ok")
    for x in blk_loads(DA, 90): k(x)
    k(ld4(RS, V_L16, "s52")); k(ld4(RS+4, V_L16, "s53"))
    k(f"buffer_load_dword v23, v20, {sr(SRD_W,4)}, s54 offen sc1")
    gB = wprep_gather(WS_WB, BA + 16, BA, L_WS2, 48, 28)
    gB_st = [x for x in gB if x.startswith("buffer_store") or x.startswith("s_add_u32 s49")]
    gB = [x for x in gB if x not in gB_st]
    for x in gB: k(x)
    k(fl_load(1))
    k("s_waitcnt vmcnt(4)")
    stamp("e0_ok")
    for kk in range(4):
        off = (kk & 1) * 1024 + (kk >> 1) * 512
        k(f"ds_write_b64 v18, {vr(DA+4*kk,2)} offset:{off}")
        k(f"ds_write_b64 v19, {vr(DA+4*kk+2,2)} offset:{off}")
    k("s_waitcnt vmcnt(0)")
    poll_flags(1, first_loaded=True)
    k("s_waitcnt lgkmcnt(0)\ns_barrier")
    for i in range(4): k(ld4(WU+16+4*i, V_L16, "s94", 1024*i))
    L = lab("x0")
    k(f"s_cmp_lg_u32 s2, 0\ns_cbranch_scc1 {L}")
    k(f"s_add_u32 s44, s61, {WS_M0}\ns_add_u32 s45, s44, 4096")
    k(ld4(A_R4, V_L16, "s44", kind='a')); k(ld4(A_R4+4, V_L16, "s45", kind='a'))
    k(f"s_cmp_eq_u32 s{S_SP}, 0\ns_cbranch_scc1 {L}")
    k(f"s_add_u32 s42, s94, {256*16384}")
    for i in range(4): k(ld4(A_WMA+4*i, V_L16, "s42", 1024*i, kind='a'))
    k.label(L)
    deferred = []
    sp_pw = []
    SUB = "neg_lo:[0,1] neg_hi:[0,1]"
    def psum(X, dst, init):
        Ls, Le = lab("ps"), lab("pe")
        for e in range(2):
            for hh in range(2):
                d = vr(dst + 4*e + 2*hh, 2)
                xr, xi = vr(X + 16 + 8*e + 2*hh, 2), vr(X + 16 + 8*e + 4 + 2*hh, 2)
                k(f"v_pk_fma_f32 {d}, {xr}, {xr}, {vr(init+4*e+2*hh,2)} neg_lo:[0,0,1] neg_hi:[0,0,1]")
                k(f"v_pk_fma_f32 {d}, {xi}, {xi}, {d}")
        k(f"s_cmp_eq_u32 s2, 0\ns_cbranch_scc1 {Ls}")
        for e in range(2):
            for hh in range(2):
                d = vr(dst + 4*e + 2*hh, 2)
                xr, xi = vr(X + 8*e + 2*hh, 2), vr(X + 8*e + 4 + 2*hh, 2)
                k(f"v_pk_fma_f32 {d}, {xr}, {xr}, {d}\nv_pk_fma_f32 {d}, {xi}, {xi}, {d}")
        k.label(Le)
        return Ls, Le, X, dst
    for lay in range(4):
        k(f"s_mov_b32 s{S_LAY}, {lay}")
        for i in (0, 2, 1, 3):
            k(f"ds_read_b128 {vr(OP+4*i,4)}, v{V_OWN} offset:{L_OPS+1024*i}")
        f1 = f2 = f3 = None
        if lay == 0:
            Q = WM
            for c in range(2):
                for w in range(2):
                    for comp in range(2):
                        k(f"ds_read_b64 {vr(Q+8*c+4*w+2*comp,2)}, v{V_QT} offset:{L_OPS+c*8192+w*4096+comp*2048}")
            xi = []
            for c in range(2):
                for comp in range(2):
                    for hh in range(2):
                        a, b = Q + 8*c + 2*comp + hh, Q + 8*c + 4 + 2*comp + hh
                        x1, x2 = BA + c*16 + comp*4 + 2*hh, BA + c*16 + 8 + comp*4 + 2*hh
                        xi += lines(f"v_lshlrev_b32 v24, 16, v{a}\nv_and_b32 v25, 0xffff0000, v{a}\nv_lshlrev_b32 v26, 16, v{b}\nv_and_b32 v27, 0xffff0000, v{b}")
                        xi += lines(f"v_add_f32 v{x1}, v24, v26\nv_add_f32 v{x1+1}, v25, v27\nv_sub_f32 v{x2}, v24, v26\nv_sub_f32 v{x2+1}, v25, v27")
                        xi += lines(f"v_mul_f32 v{x1}, v{x1}, v{RS+2*hh}\nv_mul_f32 v{x1+1}, v{x1+1}, v{RS+2*hh+1}\nv_mul_f32 v{x2}, v{x2}, v{RS+4+2*hh}\nv_mul_f32 v{x2+1}, v{x2+1}, v{RS+4+2*hh+1}")
            k("s_cmp_eq_u32 s2, 0\ns_cselect_b32 s52, 0, 1.0\ns_cselect_b32 s53, 0.5, 1.0")
            for e in range(2):
                for i in range(4):
                    d = P0 + 4*e + i
                    xi += lines(f"v_mul_f32 v{d}, v{BA+16+8*e+i}, v{BA+16+8*e+i}\nv_fmac_f32 v{d}, v{BA+16+8*e+4+i}, v{BA+16+8*e+4+i}")
                    xi += lines(f"v_mul_f32 v24, s52, v{BA+8*e+i}\nv_fmac_f32 v{d}, v24, v{BA+8*e+i}\nv_mul_f32 v25, s53, v{BA+8*e+4+i}\nv_fmac_f32 v{d}, v25, v{BA+8*e+4+i}")
            wu = ["s_waitcnt vmcnt(0)"] + gB_st
            for r in range(16): wu += lines(f"v_accvgpr_write_b32 a{A_WA+r}, v{WU+16+r}\nv_lshlrev_b32 v{WU+r}, 16, v{WU+16+r}\nv_and_b32 v{WU+16+r}, 0xffff0000, v{WU+16+r}")
            k("s_waitcnt lgkmcnt(10)")
            x0 = ["s_waitcnt lgkmcnt(0)"] + xi[:48]; xi = xi[48:]
            mf = [None] * 12
            dft(DA, OP, A_SA, True, False, False, fill=x0, per=6)
            for x in x0: k(x)
            cmul_pack(DA, TF, OP, False)
            dft(DA, OP, A_F0, False, False, False, fill=wu, per=6)
            for x in wu: k(x)
            L = lab("wma")
            k(f"s_cmp_eq_u32 s{S_SP}, 0\ns_cbranch_scc1 {L}")
            nq = 48
            for x in xi[:nq]: k(x)
            w_unpack(A_WMA, WM, WM + 16)
            k.label(L)
            f3 = xi; f3_sp = xi[nq:]
        else:
            k("s_waitcnt lgkmcnt(2)")
            dft(DA, OP, A_SA, True, False, False, midwait="s_waitcnt lgkmcnt(0)")
            cmul_pack(DA, TF, OP, False)
            dft(DA, OP, A_F0, False, False, False)
        stamp("st2", True)
        Ls, Le = lab("psp"), lab("pse")
        k(f"s_cmp_lg_u32 s{S_SP}, 0\ns_cbranch_scc1 {Ls}")
        cmul_pack(DA, WU, OP, True)
        k.label(Le)
        sp_pw.append((Ls, Le))
        stamp("pw", True)
        li = []
        if lay < 2:
            li += [f"v_mov_b32 v{28+i}, -1" for i in range(4)]
            for base, sreg in ((WS_H1 + (lay+1)*0x200000, "s60"), (WS_E1 + lay*8192, "s58")):
                for i in range(2):
                    li += lines(f"s_add_u32 s47, {sreg}, {base + 4096*i}\nbuffer_store_dwordx4 v[28:31], v{V_T16}, {sr(SRD_W,4)}, s47 offen sc1")
        if lay == 0:
            L = lab("i1s")
            k(f"s_cmp_lg_u32 s{S_SP}, 0\ns_cbranch_scc1 {L}")
            fl = list(f3) + li
            dft(DA, OP, A_F0, True, True, False, fill=fl, per=6)
            for x in fl: k(x)
            k(f"s_branch {L}_e")
            k.label(L)
            fl = list(f3_sp) + li
            dft(DA, OP, A_F0, True, True, False, fill=fl, per=6)
            for x in fl: k(x)
            k.label(f"{L}_e")
        else:
            fl = li
            dft(DA, OP, A_F0, True, True, False, fill=fl, per=6)
            for x in fl: k(x)
        if lay == 0:
            L = lab("m0")
            k(f"s_cmp_lg_u32 s2, 0\ns_cbranch_scc1 {L}")
            for i in range(4): k(f"v_accvgpr_read_b32 v{BA+i}, a{A_R4+i}\nv_accvgpr_read_b32 v{BA+8+i}, a{A_R4+4+i}")
            k.label(L)
            for r in range(12): k(f"v_accvgpr_write_b32 a{A_XH+r}, v{BA+r}")
        cmul_pack(DA, TI, OP, True)
        if lay == 0:
            for r in range(12, 32): k(f"v_accvgpr_write_b32 a{A_XH+r}, v{BA+r}")
        xf = [f"v_accvgpr_read_b32 v{DA+r}, a{A_XH+r}" for r in range(32)] if lay < 3 else []
        xf += lines(f"s_lshl_b32 s41, s{S_V}, 13\nv_add_u32 v30, s41, v{V_L16}\nv_add_u32 v29, s61, v{V_L16}")
        if lay < 3:
            xf += lines(f"s_lshl_b32 s42, s2, 6\ns_add_u32 s41, s42, {WS_H1 + lay*0x200000}")
        else:
            xf += lines(f"v_lshrrev_b32 v28, 2, v{V_TID}\nv_and_b32 v27, 3, v28\nv_bfe_u32 v26, v28, 3, 2\nv_lshl_or_b32 v27, v26, 2, v27\nv_bfe_u32 v26, v28, 2, 1\nv_lshl_or_b32 v27, v26, 4, v27")
            xf += lines(f"v_lshrrev_b32 v26, 5, v28\nv_lshl_add_u32 v27, v26, 7, v27\nv_lshlrev_b32 v27, 14, v27\nv_and_b32 v26, 3, v{V_TID}\nv_lshl_add_u32 v27, v26, 4, v27")
            xf += lines(f"v_lshlrev_b32 v29, 2, v{V_TID}\ns_lshl_b32 s41, s2, 6\ns_add_u32 s41, s41, {WS_E1}")
        dft(BA, OP, A_IB, False, True, lay > 0, fill=xf, per=5)
        for x in xf: k(x)
        for comp in range(2):
            for gq in range(4):
                k(f"ds_write_b128 v30, {vr(BA+16*comp+4*gq,4)} offset:{L_AX+comp*4096+gq*1024}")
        stamp("i2", True)
        if lay == 3: break
        k("s_waitcnt vmcnt(4) lgkmcnt(0)\ns_barrier" if lay == 0 else "s_waitcnt lgkmcnt(0)\ns_barrier")
        for c in range(2):
            for comp in range(2):
                for w in range(2):
                    k(f"ds_read_b128 {vr(WU+c*16+w*8+comp*4,4)}, v29 offset:{L_AX+(2*c+w)*8192+comp*4096}")
        n = 0
        for c in range(2):
            for comp in range(2):
                k(f"s_waitcnt lgkmcnt({6-2*n})"); n += 1
                for hh in range(2):
                    b0, b1 = vr(WU + c*16 + comp*4 + 2*hh, 2), vr(WU + c*16 + 8 + comp*4 + 2*hh, 2)
                    x1, x2 = vr(DA + c*16 + comp*4 + 2*hh, 2), vr(DA + c*16 + 8 + comp*4 + 2*hh, 2)
                    k(f"v_pk_add_f32 {x1}, {x1}, {b0}\nv_pk_add_f32 {x2}, {x2}, {b0}")
                    k(f"v_pk_add_f32 {x1}, {x1}, {b1}\nv_pk_add_f32 {x2}, {x2}, {b1} {SUB}")
        if stop == f"layer{lay}":
            dbg_dump(list(range(DA, DA+32))); flush_deferred(k, deferred); special_pw(k, sp_pw, NEG2); return k
        deferred.append(psum(DA, TMP, P0))
        if lay < 2: k("s_waitcnt vmcnt(0)")
        for e in range(2):
            k(f"v_min_u32 v{TMP+4*e+3}, -2, v{TMP+4*e+3}")
            k(f"s_add_u32 s47, s41, {e*64*16384}")
            k(f"buffer_store_dwordx4 {vr(TMP+4*e,4)}, v{V_SC}, {sr(SRD_W,4)}, s47 offen sc1")
        stamp("h1_st", True)
        L1 = lab("w1")
        k(f"s_cmp_lg_u32 s2, 0\ns_cbranch_scc1 {L1}")
        k("s_mov_b32 s52, 0x3a800000\ns_mov_b32 s53, 0xc4800000")
        for e in range(2):
            for hh in range(2):
                x = vr(DA + 8*e + 2*hh, 2)
                k(f"v_pk_mul_f32 {vr(OP,2)}, {x}, s[52:53] op_sel_hi:[1,0]")
                k(f"v_cvt_pk_bf16_f32 v{OP+1}, v{OP}, v{OP+1}")
                k(f"v_lshlrev_b32 v{OP}, 16, v{OP+1}\nv_and_b32 v{OP+1}, 0xffff0000, v{OP+1}")
                k(f"v_pk_fma_f32 {x}, {vr(OP,2)}, s[52:53], {x} op_sel:[0,1,0] op_sel_hi:[1,1,1]")
        if lay > 0:
            w_unpack(A_WMA if lay == 1 else A_WMB, WM, WM + 16)
        k.label(L1)
        if lay > 0:
            w_unpack(A_WA if lay == 1 else A_WB, WU, WU + 16)
        k(f"s_add_u32 s42, s59, {WS_H1 + lay*0x200000}")
        set4(90, "s42")
        k(f"v_and_b32 v30, 3, v{V_L}\nv_lshlrev_b32 v30, 2, v30\nv_bfe_u32 v29, v{V_L}, 4, 1\nv_lshl_add_u32 v30, v29, 1, v30\nv_add_u32 v30, v30, v{V_H}")
        k(f"v_lshlrev_b32 v30, 4, v30\ns_lshl_b32 s41, s{S_V}, 2\ns_add_u32 s41, s41, {L_SM+256}\nv_add_u32 v30, s41, v30")
        k(f"v_and_b32 v28, 15, v{V_L}\nv_lshlrev_b32 v29, 4, v28\nv_lshrrev_b32 v27, 4, v{V_L}\nv_lshlrev_b32 v27, 13, v27\nv_lshl_add_u32 v28, v28, 2, v27")
        k(f"s_lshr_b32 s42, s2, 7\ns_lshl_b32 s42, s42, 15\ns_lshr_b32 s41, s59, 8\ns_add_u32 s41, s41, s42\ns_add_u32 s41, s41, {WS_H2 + lay*65536}")
        k(f"s_and_b32 s43, s2, 7\ns_lshl_b32 s43, s43, 13\ns_add_u32 s52, s43, s61\ns_add_u32 s52, s52, {WS_H2 + lay*65536}\ns_add_u32 s53, s52, 4096")
        k("v_mov_b32 v27, 0x36000000")
        k("s_waitcnt vmcnt(0)")
        stamp("wnext", True)
        poll(blk_loads(OP, 90), [OP+3, OP+7, OP+11, OP+15])
        stamp("h1_ok", True)
        for hh in range(2):
            k(f"v_pk_add_f32 {vr(OP+2*hh,2)}, {vr(OP+2*hh,2)}, {vr(OP+4+2*hh,2)}")
            k(f"v_pk_add_f32 {vr(OP+8+2*hh,2)}, {vr(OP+8+2*hh,2)}, {vr(OP+12+2*hh,2)}")
        for hh in range(2):
            k(f"v_pk_add_f32 {vr(OP+2*hh,2)}, {vr(OP+2*hh,2)}, {vr(OP+8+2*hh,2)}")
        k(f"v_permlane32_swap_b32 v{OP}, v{OP+1}\nv_permlane32_swap_b32 v{OP+2}, v{OP+3}")
        k(f"v_add_f32 v{OP}, v{OP}, v{OP+1}\nv_add_f32 v{OP+2}, v{OP+2}, v{OP+3}")
        k(f"v_permlane16_swap_b32 v{OP}, v{OP+2}")
        k(f"v_add_f32 v{OP}, v{OP}, v{OP+2}")
        k(f"v_add_f32_dpp v{OP}, v{OP}, v{OP} row_ror:8 row_mask:0xf bank_mask:0xf")
        k(f"v_add_f32_dpp v{OP}, v{OP}, v{OP} row_ror:4 row_mask:0xf bank_mask:0xf")
        k(f"ds_write_b32 v30, v{OP}")
        k("s_waitcnt lgkmcnt(0)\ns_barrier")
        Lr2 = lab("red2")
        k(f"s_cmp_lg_u32 s{S_V}, 3\ns_cbranch_scc1 {Lr2}")
        k(f"ds_read_b128 {vr(OP,4)}, v29 offset:{L_SM+256}")
        k("s_waitcnt lgkmcnt(0)")
        k(f"v_pk_add_f32 {vr(OP,2)}, {vr(OP,2)}, {vr(OP+2,2)}\nv_add_f32 v{OP}, v{OP}, v{OP+1}")
        k(f"v_fma_f32 v{OP}, v{OP}, v27, v23")
        sd_from_var(OP)
        k(f"v_rcp_f32 v{OP}, v{OP}")
        k(f"v_min_u32 v{OP}, -2, v{OP}")
        k(f"buffer_store_dword v{OP}, v28, {sr(SRD_W,4)}, s41 offen sc1")
        k.label(Lr2)
        stamp("red", True)
        if lay == 0:
            k(f"s_add_u32 s42, s63, {WS_WB}\ns_add_u32 s43, s42, {256*16384}")
            for i in range(4): k(ld4(WU+16+4*i, V_L16, "s42", 1024*i))
            Lx = lab("wbx")
            k(f"s_cmp_eq_u32 s{S_SP}, 0\ns_cbranch_scc1 {Lx}")
            for i in range(4): k(ld4(WM+16+4*i, V_L16, "s43", 1024*i))
            k("s_waitcnt vmcnt(0)")
            for r in range(16): k(f"v_accvgpr_write_b32 a{A_WMB+r}, v{WM+16+r}")
            w_unpack_v(WM+16, WM, WM+16)
            k.label(Lx)
            k("s_waitcnt vmcnt(0)")
            for r in range(16): k(f"v_accvgpr_write_b32 a{A_WB+r}, v{WU+16+r}")
            w_unpack_v(WU+16, WU, WU+16)
        k("s_waitcnt vmcnt(0)\ns_barrier")
        poll([ld4(RS, V_L16, "s52"), ld4(RS+4, V_L16, "s53")], [RS+j for j in range(8)])
        stamp("h2_ok", True)
        for c in range(2):
            for comp in range(2):
                o = OP + 8*c + 4*comp
                for hh in range(2):
                    x1, x2 = vr(DA + c*16 + comp*4 + 2*hh, 2), vr(DA + c*16 + 8 + comp*4 + 2*hh, 2)
                    t = TMP + 4*hh
                    k(f"v_pk_mul_f32 {x1}, {x1}, {vr(RS+2*hh,2)}")
                    k(f"v_pk_fma_f32 {vr(t,2)}, {x2}, {vr(RS+4+2*hh,2)}, {x1}")
                    k(f"v_pk_fma_f32 {vr(t+2,2)}, {x2}, {vr(RS+4+2*hh,2)}, {x1} {NEG2}")
                    k(f"v_cvt_pk_bf16_f32 v{o+hh}, v{t}, v{t+1}\nv_cvt_pk_bf16_f32 v{o+2+hh}, v{t+2}, v{t+3}")
                for w in range(2):
                    k(f"ds_write_b64 v{V_QT}, {vr(o+2*w,2)} offset:{L_OPS+c*8192+w*4096+comp*2048}")
        k("s_waitcnt lgkmcnt(0)\ns_barrier")
    k("s_waitcnt lgkmcnt(0)\ns_barrier")
    def fo(v, comp, kk): return (L_AX + v*8192 + comp*4096 + kk*1024) // 256
    for kk in range(4):
        b = DA + 8*kk
        k(f"ds_read2st64_b32 {vr(b,2)}, v29 offset0:{fo(0,0,kk)} offset1:{fo(2,0,kk)}")
        k(f"ds_read2st64_b32 {vr(b+2,2)}, v29 offset0:{fo(1,0,kk)} offset1:{fo(3,0,kk)}")
        k(f"ds_read2st64_b32 {vr(b+4,2)}, v29 offset0:{fo(0,1,kk)} offset1:{fo(2,1,kk)}")
        k(f"ds_read2st64_b32 {vr(b+6,2)}, v29 offset0:{fo(1,1,kk)} offset1:{fo(3,1,kk)}")
    k("s_cmp_eq_u32 s2, 0\ns_cselect_b64 s[44:45], -1, 0")
    for kk in range(4):
        b = DA + 8*kk; o = OP + 4*kk; y = TMP; t = TMP + 8
        k(f"s_waitcnt lgkmcnt({4*(3-kk)})")
        k(f"v_pk_add_f32 {vr(y,2)}, {vr(b,2)}, {vr(b+2,2)}")
        k(f"v_pk_add_f32 {vr(y+2,2)}, {vr(b,2)}, {vr(b+2,2)} {SUB}")
        k(f"v_pk_add_f32 {vr(y+4,2)}, {vr(b+4,2)}, {vr(b+6,2)}")
        k(f"v_pk_add_f32 {vr(y+6,2)}, {vr(b+4,2)}, {vr(b+6,2)} {SUB}")
        k(f"v_pk_add_f32 {vr(t,2)}, {vr(y,2)}, {vr(y+6,2)} {SUB}")
        k(f"v_pk_add_f32 {vr(t+2,2)}, {vr(y+4,2)}, {vr(y+2,2)}")
        k(f"v_pk_add_f32 {vr(t+4,2)}, {vr(y,2)}, {vr(y+6,2)}")
        k(f"v_pk_add_f32 {vr(t+6,2)}, {vr(y+2,2)}, {vr(y+4,2)} {SUB}")
        k(f"v_cvt_pk_bf16_f32 v{o}, v{t}, v{t+2}")
        k(f"v_cvt_pk_bf16_f32 v{o+1}, v{t+5}, v{t+7}")
        k(f"v_cvt_pk_bf16_f32 v{o+2}, v{t+1}, v{t+3}")
        k(f"v_cvt_pk_bf16_f32 v{o+3}, v{t+4}, v{t+6}")
        k("s_mov_b64 exec, s[44:45]")
        k(f"v_cvt_pk_bf16_f32 v{o}, v{y}, v{y+2}")
        k(f"v_cvt_pk_bf16_f32 v{o+1}, v{y+4}, v{y+6}")
        k(f"v_cvt_pk_bf16_f32 v{o+3}, v{t+5}, v{t+7}")
        k("s_mov_b64 exec, -1")
        k(f"v_min_u32 v{o+3}, -2, v{o+3}")
        k(f"s_add_u32 s47, s41, {kk*32*16384}")
        k(f"buffer_store_dwordx4 {vr(o,4)}, v27, {sr(SRD_W,4)}, s47 offen sc1")
    stamp("e1_st")
    L = lab("ep")
    k(f"s_or_b32 s42, s2, s{S_V}\ns_cmp_lg_u32 s42, 0\ns_cbranch_scc1 {L}")
    k(f"v_mov_b32 v30, s95\nv_mov_b32 v31, {WS_EP}\ns_mov_b64 exec, 1")
    k(f"buffer_store_dword v30, v31, {sr(SRD_W,4)}, 0 offen sc1")
    k("s_mov_b64 exec, -1")
    k.label(L)
    k(f"v_mul_f32 v28, 0x3d000000, v{V_PIF}\nv_mul_f32 v27, v28, v{V_H16}\nv_mul_f32 v27, 0.5, v27")
    k("s_mov_b32 s62, 0x3a800000")
    angles(DA, DA + 16, 27, 28, n=8, scale="s[62:63]")
    k(f"v_and_b32 v26, 1, v{V_PI}\nv_mul_u32_u24 v26, 0x8000, v26\nv_lshl_or_b32 v26, v26, 16, v26")
    for n in range(8):
        u, e2 = n >> 1, n & 1
        c, s_ = DA + n, DA + 16 + n
        t = TMP + 4 * (n % 2)
        k(f"v_cvt_pk_bf16_f32 v{t}, v{c}, -v{s_}\nv_cvt_pk_bf16_f32 v{t+1}, v{s_}, v{c}")
        k(f"v_xor_b32 v{t+2}, v26, v{t}\nv_xor_b32 v{t+3}, v26, v{t+1}")
        k(f"v_accvgpr_write_b32 a{A_R4+4*u+2*e2}, v{t}\nv_accvgpr_write_b32 a{A_R4+16+4*u+2*e2}, v{t+1}")
        k(f"v_accvgpr_write_b32 a{A_R4+4*u+2*e2+1}, v{t+2}\nv_accvgpr_write_b32 a{A_R4+16+4*u+2*e2+1}, v{t+3}")
    k(f"v_mul_f32 v28, 0x3a800000, v{V_PIF}\nv_mul_f32 v27, v28, v{V_H16}")
    angles(TF, TF + 16, 27, 28)
    for e in range(2): mfma(BA + 16*e, ar(A_ID, 4), ar(A_XA+8*e, 4), "0")
    for e in range(2): mfma(BA + 16*e, ar(A_ID+4, 4), ar(A_XA+8*e+4, 4), vr(BA+16*e, 16))
    k(f"v_lshrrev_b32 v28, 2, v{V_TID}\nv_and_b32 v29, 3, v{V_TID}\nv_lshlrev_b32 v29, 12, v29\nv_add_u32 v29, {L_RQ}, v29")
    def rqaddr(dst, j):
        k(f"v_and_b32 v25, 31, v{j}")
        pinv(24, 25, 23)
        k(f"v_lshl_add_u32 v{dst}, v24, 4, v29")
        k(f"v_bfe_u32 v24, v{j}, 5, 1\nv_lshl_add_u32 v{dst}, v24, 3, v{dst}")
        k(f"v_bfe_u32 v24, v{j}, 6, 2\nv_lshl_add_u32 v{dst}, v24, 10, v{dst}")
        k(f"v_bfe_u32 v24, v{j}, 8, 1\nv_lshl_add_u32 v{dst}, v24, 9, v{dst}")
    rqaddr(P0, 28)
    for kk in range(4):
        k(f"v_add_u32 v26, {kk*64}, v28\nv_sub_u32 v27, 0x200, v26")
        if kk == 0:
            k("v_cmp_eq_u32 vcc, 0, v26\nv_mov_b32 v24, 0x100\nv_cndmask_b32 v27, v27, v24, vcc")
        rqaddr(P0 + 1 + kk, 27)
    k(f"s_add_u32 s42, s58, {WS_E1}")
    set4(90, "s42")
    k("s_waitcnt vmcnt(0)")
    stamp("tab4")
    poll(blk_loads(DA, 90), [DA+3, DA+7, DA+11, DA+15])
    stamp("e1_ok")
    for kk in range(4):
        k(f"ds_write_b64 v{P0}, {vr(DA+4*kk,2)} offset:{kk*1024}")
        k(f"ds_write_b64 v{P0+1+kk}, {vr(DA+4*kk+2,2)}")
    k("s_waitcnt lgkmcnt(0)\ns_barrier")
    for u in range(4):
        k(f"ds_read_b128 {vr(OP+4*u,4)}, v{V_OWN} offset:{L_RQ+1024*u}")
    for u in range(4):
        k(f"s_waitcnt lgkmcnt({3-u})")
        mfma(DA, vr(OP+4*u, 4), ar(A_R4+4*u, 4), "0" if u == 0 else vr(DA, 16))
        mfma(DA+16, vr(OP+4*u, 4), ar(A_R4+16+4*u, 4), "0" if u == 0 else vr(DA+16, 16))
    cmul_pack(DA, TF, OP, True)
    dft(BA, OP, A_F0, True, True, True)
    for e in range(2):
        for p in range(8):
            k(f"v_cvt_pk_bf16_f32 v{OP+8*e+p}, v{BA+16*e+2*p}, v{BA+16*e+2*p+1}")
        for t in range(2):
            k(f"buffer_store_dwordx4 {vr(OP+8*e+4*t,4)}, v{V_XO}, {sr(SRD_O,4)}, s{50+e} offen offset:{16*t}")
    stamp("out_st")
    if prof:
        k("s_waitcnt vmcnt(0)")
        stamp("end")
        dbg_dump([22])
    k("s_endpgm")
    flush_deferred(k, deferred)
    special_pw(k, sp_pw, NEG2)
    return k

def special_pw(k, sp_pw, NEG2):
    for Ls, Le in sp_pw: k.label(Ls)
    k(f"s_mul_i32 s41, s{S_E}, {2*REV_C}\ns_add_u32 s41, s41, {L_REV}")
    k(f"v_mul_u32_u24 v30, {REV_ROW}, v{V_PI}\nv_lshl_add_u32 v30, v{V_H}, 6, v30\nv_add_u32 v30, s41, v30")
    k(f"v_add_u32 v29, s{S_E}, v{V_PI}\nv_cmp_eq_u32 vcc, 0, v29\nv_sub_u32 v29, 32, v29\nv_and_b32 v29, 31, v29\nv_mul_u32_u24 v29, {REV_ROW}, v29")
    k(f"v_xor_b32 v28, 1, v{V_H}\nv_lshl_add_u32 v29, v28, 6, v29\nv_cndmask_b32 v28, 0, 4, vcc\nv_add3_u32 v29, v29, v28, s41")
    k("s_nop 3")
    for comp in range(2):
        for g in range(4):
            k(f"ds_write_b128 v30, {vr(DA+16*comp+4*g,4)} offset:{comp*REV_C+16*g}")
    k("s_mov_b64 exec, 1")
    for comp in range(2):
        k(f"ds_write_b32 v30, v{DA+16*comp} offset:{comp*REV_C+128}")
    k("s_mov_b64 exec, -1")
    for g in range(4):
        k(f"ds_read_b128 {vr(OP+4*g,4)}, v29 offset:{16*g}")
    for p in range(8):
        re, im = vr(DA+2*p, 2), vr(DA+16+2*p, 2)
        c, s = vr(WU+2*p, 2), vr(WU+16+2*p, 2)
        t = TMP + 4 * (p % 2)
        k(f"v_pk_mul_f32 {vr(t,2)}, {re}, {c}\nv_pk_mul_f32 {vr(t+2,2)}, {re}, {s}")
        k(f"v_pk_fma_f32 {re}, {im}, {s}, {vr(t,2)} {NEG2}")
        k(f"v_pk_fma_f32 {im}, {im}, {c}, {vr(t+2,2)}")
    for g in range(4):
        k(f"ds_read_b128 {vr(WU+4*g,4)}, v29 offset:{REV_C+16*g}")
    SW = "op_sel:[1,0,0] op_sel_hi:[0,1,1]"
    k("s_waitcnt lgkmcnt(4)")
    for p in range(8):
        re, im = vr(DA+2*p, 2), vr(DA+16+2*p, 2)
        mc, ms = vr(WM+2*p, 2), vr(WM+16+2*p, 2)
        er = vr(OP+14-2*p, 2)
        k(f"v_pk_fma_f32 {re}, {er}, {mc}, {re} {SW}\nv_pk_fma_f32 {im}, {er}, {ms}, {im} {SW}")
    k("s_waitcnt lgkmcnt(0)")
    for p in range(8):
        re, im = vr(DA+2*p, 2), vr(DA+16+2*p, 2)
        mc, ms = vr(WM+2*p, 2), vr(WM+16+2*p, 2)
        ei = vr(WU+14-2*p, 2)
        k(f"v_pk_fma_f32 {re}, {ei}, {ms}, {re} {SW}\nv_pk_fma_f32 {im}, {ei}, {mc}, {im} {SW} {NEG2}")
        k(f"v_cvt_pk_bf16_f32 v{OP+p}, v{DA+2*p}, v{DA+2*p+1}\nv_cvt_pk_bf16_f32 v{OP+8+p}, v{DA+16+2*p}, v{DA+16+2*p+1}")
    k("s_nop 1")
    for n, (Ls, Le) in enumerate(sp_pw[:-1]):
        k(f"s_cmp_eq_u32 s{S_LAY}, {n}\ns_cbranch_scc1 {Le}")
    k(f"s_branch {sp_pw[-1][1]}")

def flush_deferred(k, deferred):
    for Ls, Le, X, dst in deferred:
        k.label(Ls)
        for e in range(2):
            for hh in range(2):
                d = vr(dst + 4*e + 2*hh, 2)
                xi = vr(X + 8*e + 4 + 2*hh, 2)
                k(f"v_pk_mul_f32 v[30:31], {xi}, 0.5 op_sel_hi:[1,0]\nv_pk_fma_f32 {d}, v[30:31], {xi}, {d}")
        k(f"s_branch {Le}")

HEADER = """; Kernarg layout for this problem (72 bytes, ptrs only, base s[0:1]):
"""

def emit(stop=None, listform=True, prof=False):
    k = gen(stop, prof=prof)
    k.label("L_fail")
    k("s_mov_b64 exec, -1\ns_waitcnt vmcnt(0) lgkmcnt(0)")
    k.label("L_end")
    k("s_endpgm")
    body = k.text()
    launch = f"; @launch kernel={NAME} grid=(256,1,1) block=(256,1,1) lds={LDS_BYTES}" if listform else f"; @launch grid=(256,1,1) block=(256,1,1) lds={LDS_BYTES}"
    return f"""{HEADER}{launch}
.amdgcn_target "amdgcn-amd-amdhsa--gfx950"
.text
.globl {NAME}
.p2align 8
.type {NAME},@function
{NAME}:
{body}
.fill {CODE_BYTES // 4}, 4, 0xbf800000
.section .rodata,"a"
.p2align 6
.amdhsa_kernel {NAME}
  .amdhsa_next_free_vgpr 512
  .amdhsa_next_free_sgpr 96
  .amdhsa_accum_offset 256
  .amdhsa_group_segment_fixed_size 0
  .amdhsa_kernarg_size 72
  .amdhsa_user_sgpr_count 2
  .amdhsa_user_sgpr_kernarg_segment_ptr 1
  .amdhsa_system_sgpr_workgroup_id_x 1
.end_amdhsa_kernel
"""

if __name__ == "__main__":
    stop = sys.argv[2] if len(sys.argv) > 2 else None
    open(sys.argv[1], "w").write(emit(stop))
```
